```python
import torch

def _softmax(x, axis=-1):
    return torch.softmax(x, dim=axis)

def _gelu(x):
    return torch.nn.functional.gelu(x, approximate='tanh')

def _silu(x):
    return torch.nn.functional.silu(x)

def _sigmoid(x):
    return torch.sigmoid(x)

def _layernorm(x, axis=-1, eps=1e-05):
    m = x.mean(dim=axis, keepdim=True)
    v = x.var(dim=axis, keepdim=True, unbiased=False)
    return (x - m) / torch.sqrt(v + eps)

def _scatter_add(tgt, idx, src, axis=0):
    return tgt.clone().index_add_(axis, idx, src)

def _segment_sum(src, seg, n):
    out = torch.zeros((n,) + src.shape[1:], dtype=src.dtype)
    return out.index_add_(0, seg, src)

def _pad(x, pw):
    flat = tuple((v for pair in reversed(pw) for v in pair))
    return torch.nn.functional.pad(x, flat)
kernel_name = 'sequential_preLN__sliding_block__mixer_gmlp__prompt'

def setup_inputs():

    _w = lambda a: (lambda t: t.to(torch.bfloat16) if t.is_floating_point() else t)(torch.as_tensor(a))

    def _A_setup():
        B, S, D = (1, 2048, 512)
        return {'x': _w((lambda *s: torch.randn(*s, dtype=torch.bfloat16) * 0.05)(B, S, D)), 'wqkv': _w((lambda *s: torch.randn(*s, dtype=torch.bfloat16) * 0.05)(D, 3 * D)), 'wo': _w((lambda *s: torch.randn(*s, dtype=torch.bfloat16) * 0.05)(D, D))}
    _A_in = _A_setup()

    def _B_setup():
        B, S, D, F = (1, 2048, 512, 1792)
        Fh = F // 2
        return {'x': _w((lambda *s: torch.randn(*s, dtype=torch.bfloat16) * 0.05)(B, S, D)), 'w_in': _w((lambda *s: torch.randn(*s, dtype=torch.bfloat16) * 0.4)(D, 2 * Fh)), 'w_sp': _w(0.01 * (lambda *s: torch.randn(*s, dtype=torch.bfloat16) * 0.4)(S, S)), 'b_sp': _w(1.0 + 0.01 * (lambda *s: torch.randn(*s, dtype=torch.bfloat16) * 0.05)(S)), 'w_out': _w((lambda *s: torch.randn(*s, dtype=torch.bfloat16) * 0.05)(Fh, D))}
    _B_in = _B_setup()
    return {'A_x': _A_in['x'], 'A_wqkv': _A_in['wqkv'], 'A_wo': _A_in['wo'], 'B_x': _B_in['x'], 'B_w_in': _B_in['w_in'], 'B_w_sp': _B_in['w_sp'], 'B_b_sp': _B_in['b_sp'], 'B_w_out': _B_in['w_out']}

def reference(A_x, A_wqkv, A_wo, B_x, B_w_in, B_w_sp, B_b_sp, B_w_out):

    def _A_ref(x, wqkv, wo):
        B, S, D = x.shape
        H = 32
        Dh = D // H
        W = 256
        qkv = (lambda x, *d: x.permute(*d))((x @ wqkv).reshape(B, S, 3, H, Dh), 2, 0, 3, 1, 4)
        q, k, v = (qkv[0], qkv[1], qkv[2])
        scores = torch.einsum('bhqd,bhkd->bhqk', q, k) * Dh ** (-0.5)
        idx = torch.arange(S)
        mask = (idx[:, None] - idx[None, :] >= 0) & (idx[:, None] - idx[None, :] < W)
        scores = torch.where(mask[None, None], scores, -1000000000.0)
        p = _softmax(scores, axis=-1)
        o = torch.einsum('bhqk,bhkd->bhqd', p, v)
        return (lambda x, *d: x.permute(*d))(o, 0, 2, 1, 3).reshape(B, S, D) @ wo

    def _B_ref(x, w_in, w_sp, b_sp, w_out):
        B, S, D = x.shape
        F = w_in.shape[-1]
        Fh = F // 2
        z = _gelu(torch.einsum('bsd,df->bsf', x, w_in))
        z1 = z[..., :Fh].clone()
        z2 = _layernorm(z[..., Fh:], axis=-1)
        g = torch.einsum('ts,bsf->btf', w_sp, z2) + b_sp[None, :, None]
        return torch.einsum('bsf,fd->bsd', z1 * g, w_out)
    x = A_x
    h = x + _A_ref(_layernorm(x, axis=-1), A_wqkv, A_wo)
    h2 = h + _B_ref(_layernorm(h, axis=-1), B_w_in, B_w_sp, B_b_sp, B_w_out)
    return h2
```

```python
from gen import *
def gen_attn(a, name):
    NWG = 32 * 32
    END = a.uniq("end")
    a.l.append(f".globl {name}\n.p2align 8\n.type {name},@function")
    a.lab(name)
    a.e(f"s_cmp_ge_u32 s2, {NWG}")
    a.e(f"s_cbranch_scc1 {END}")
    a.e(f"s_load_dwordx2 s[4:5], s[0:1], {KA['ws']}")
    a.e("s_and_b32 s24, s2, 31")
    a.e("s_lshr_b32 s25, s2, 5")
    a.e("v_and_b32 v1, 63, v0")
    a.e("v_lshrrev_b32 v2, 6, v0")
    a.e("s_nop 0")
    a.e("v_readfirstlane_b32 s28, v2")
    a.e("s_waitcnt lgkmcnt(0)")
    a.e("s_mov_b32 s8, s4"); a.e("s_mov_b32 s9, s5")
    a.e("s_mov_b32 s12, s4"); a.e("s_mov_b32 s13, s5")
    a.e("s_mov_b32 s16, s4"); a.e("s_mov_b32 s17, s5")
    a.e("s_lshl_b32 s26, s25, 16")
    a.e(f"s_add_u32 s4, s4, s26"); a.e("s_addc_u32 s5, s5, 0")
    a.e("s_mov_b32 s6, 0x10000"); a.e("s_mov_b32 s7, 0x00020000")
    a.e(f"s_add_u32 s27, s26, {WS_K}")
    a.e(f"s_add_u32 s8, s8, s27"); a.e("s_addc_u32 s9, s9, 0")
    a.e("s_mov_b32 s10, 0x10000"); a.e("s_mov_b32 s11, 0x00020000")
    a.e(f"s_add_u32 s27, s26, {WS_VT}")
    a.e(f"s_add_u32 s12, s12, s27"); a.e("s_addc_u32 s13, s13, 0")
    a.e("s_mov_b32 s14, 0x10000"); a.e("s_mov_b32 s15, 0x00020000")
    srd(a, 16, 'ws', WS_O, 2*MB)
    a.e("s_lshl_b32 s29, s24, 6")
    a.e("s_lshl_b32 s30, s28, 4")
    a.e("s_add_u32 s29, s29, s30")
    a.e("v_and_b32 v2, 15, v1")
    a.e("v_lshrrev_b32 v3, 4, v1")
    a.e("v_lshlrev_b32 v4, 5, v2")
    a.e("v_lshl_add_u32 v4, v3, 3, v4")
    a.e("v_lshlrev_b32 v5, 12, v2")
    a.e("v_lshl_add_u32 v5, v3, 3, v5")
    a.e("s_lshl_b32 s30, s29, 5")
    a.e("buffer_load_dwordx2 v[6:7], v4, s[4:7], s30 offen")
    KF = 32; VF = 72; SC = 112
    a.e("s_sub_i32 s31, s29, 256")
    for j in range(17):
        a.e(f"s_add_i32 s32, s31, {16*j}")
        a.e("s_max_i32 s32, s32, 0")
        a.e("s_lshl_b32 s33, s32, 5")
        a.e(f"buffer_load_dwordx2 v[{KF+2*j}:{KF+2*j+1}], v4, s[8:11], s33 offen")
        a.e("s_lshl_b32 s33, s32, 1")
        a.e(f"buffer_load_dwordx2 v[{VF+2*j}:{VF+2*j+1}], v5, s[12:15], s33 offen")
    for r in range(SC, SC+68): a.e(f"v_mov_b32 v{r}, 0")
    for r in range(8, 12): a.e(f"v_mov_b32 v{r}, 0")
    a.e("v_mov_b32 v12, 0xff800000")
    a.e("v_lshlrev_b32 v13, 2, v3")
    a.e("v_sub_u32 v13, v13, v2")
    a.e("s_waitcnt vmcnt(0)")
    for j in range(17):
        a.e(f"v_mfma_f32_16x16x16_bf16 v[{SC+4*j}:{SC+4*j+3}], v[{KF+2*j}:{KF+2*j+1}], v[6:7], v[{SC+4*j}:{SC+4*j+3}]")
    a.e("s_nop 7")
    for r in range(4):
        a.e(f"v_cmp_gt_i32 vcc, {-r}, v13")
        a.e(f"v_cmp_ge_i32 s[34:35], {-r}, v13" if False else f"v_cmp_le_i32 s[34:35], {-r}, v13")
        a.e(f"v_cmp_eq_i32 s[36:37], {-r}, v13")
        a.e("s_nop 1")
        a.e("s_or_b64 s[38:39], vcc, s[36:37]")
        a.e(f"v_cndmask_b32 v{SC+r}, v{SC+r}, v12, s[38:39]")
        a.e("s_andn2_b64 s[38:39], s[34:35], s[36:37]")
        a.e(f"v_cndmask_b32 v{SC+64+r}, v{SC+64+r}, v12, s[38:39]")
    for j in range(16):
        L = a.uniq("ok")
        a.e(f"s_add_i32 s32, s31, {16*j}")
        a.e("s_cmp_ge_i32 s32, 0")
        a.e(f"s_cbranch_scc1 {L}")
        for r in range(4): a.e(f"v_mov_b32 v{SC+4*j+r}, v12")
        a.lab(L)
    a.e(f"v_max3_f32 v14, v{SC}, v{SC+1}, v{SC+2}")
    rr = list(range(SC+3, SC+68))
    while len(rr) >= 2:
        a.e(f"v_max3_f32 v14, v14, v{rr[0]}, v{rr[1]}"); rr = rr[2:]
    if rr: a.e(f"v_max_f32 v14, v14, v{rr[0]}")
    a.e("v_mov_b32 v15, v14")
    a.e("s_nop 1")
    a.e("v_permlane32_swap_b32 v15, v14")
    a.e("v_max_f32 v14, v14, v15")
    a.e("v_mov_b32 v15, v14")
    a.e("s_nop 1")
    a.e("v_permlane16_swap_b32 v15, v14")
    a.e("v_max_f32 v14, v14, v15")
    c = 0.25 * 1.4426950408889634
    a.e(f"s_mov_b32 s40, 0x{f32hex(c)}")
    a.e("v_mul_f32 v14, s40, v14")
    a.e("v_mov_b32 v16, 0")
    a.e("v_mov_b32 v17, 0")
    for r in range(SC, SC+68):
        a.e(f"v_fma_f32 v{r}, v{r}, s40, -v14")
        a.e(f"v_exp_f32 v{r}, v{r}")
    a.e("s_nop 0")
    for j in range(17):
        r = SC + 4*j
        a.e(f"v_add_f32 v16, v16, v{r}")
        a.e(f"v_add_f32 v17, v17, v{r+1}")
        a.e(f"v_add_f32 v16, v16, v{r+2}")
        a.e(f"v_add_f32 v17, v17, v{r+3}")
        a.e(f"v_cvt_pk_bf16_f32 v{KF+2*j}, v{r}, v{r+1}")
        a.e(f"v_cvt_pk_bf16_f32 v{KF+2*j+1}, v{r+2}, v{r+3}")
    a.e("v_add_f32 v16, v16, v17")
    a.e("s_nop 1")
    for j in range(17):
        a.e(f"v_mfma_f32_16x16x16_bf16 v[8:11], v[{VF+2*j}:{VF+2*j+1}], v[{KF+2*j}:{KF+2*j+1}], v[8:11]")
    a.e("v_mov_b32 v15, v16")
    a.e("s_nop 1")
    a.e("v_permlane32_swap_b32 v15, v16")
    a.e("v_add_f32 v16, v16, v15")
    a.e("v_mov_b32 v15, v16")
    a.e("s_nop 1")
    a.e("v_permlane16_swap_b32 v15, v16")
    a.e("v_add_f32 v16, v16, v15")
    a.e("v_rcp_f32 v16, v16")
    a.e("s_nop 7")
    for r in range(4): a.e(f"v_mul_f32 v{8+r}, v{8+r}, v16")
    a.e("v_cvt_pk_bf16_f32 v8, v8, v9")
    a.e("v_cvt_pk_bf16_f32 v9, v10, v11")
    a.e("v_lshlrev_b32 v4, 10, v2")
    a.e("v_lshl_add_u32 v4, v3, 3, v4")
    a.e("s_lshl_b32 s30, s29, 10")
    a.e("s_lshl_b32 s31, s25, 5")
    a.e("s_add_u32 s30, s30, s31")
    a.e("buffer_store_dwordx2 v[8:9], v4, s[16:19], s30 offen")
    a.lab(END)
    a.e("s_endpgm")
    return NWG, 0, 184
```

```python
import sys
NAME = "sequential_preLN__sliding_block__mixer_gmlp__prompt"
MB = 1 << 20
WS_Q, WS_K, WS_VT, WS_O, WS_H, WS_Z, WS_Y, WS_ST = 0, 2*MB, 4*MB, 6*MB, 8*MB, 10*MB, 18*MB, 22*MB
KA = dict(x=0, wqkv=8, wo=16, w_in=32, w_sp=40, b_sp=48, w_out=56, out=64, dbg=72, ws=80)
S, D = 2048, 512

class Asm:
    def __init__(self):
        self.l = []
        self.n = 0
    def e(self, s):
        self.l.append("    " + s)
    def lab(self, s):
        self.l.append(s + ":")
    def uniq(self, p):
        self.n += 1
        return f"L_{p}_{self.n}"
    def text(self):
        return "\n".join(self.l) + "\n"

def srd(a, sreg, karg, off, size):
    if off:
        a.e(f"s_add_u32 s{sreg}, s{sreg}, 0x{off:x}")
        a.e(f"s_addc_u32 s{sreg+1}, s{sreg+1}, 0")
    a.e(f"s_mov_b32 s{sreg+2}, 0x{size:x}")
    a.e(f"s_mov_b32 s{sreg+3}, 0x00020000")

def kd(name, nvgpr, nsgpr=96):
    nv = (nvgpr + 7) // 8 * 8
    return f""".section .rodata,"a"
.p2align 6
.amdhsa_kernel {name}
  .amdhsa_next_free_vgpr {nv}
  .amdhsa_next_free_sgpr {nsgpr}
  .amdhsa_accum_offset {nv}
  .amdhsa_group_segment_fixed_size 0
  .amdhsa_kernarg_size 88
  .amdhsa_user_sgpr_count 2
  .amdhsa_user_sgpr_kernarg_segment_ptr 1
  .amdhsa_system_sgpr_workgroup_id_x 1
.end_amdhsa_kernel
.text
"""

def unpack2(a, lo, hi, src):
    a.e(f"v_lshlrev_b32 v{lo}, 16, v{src}")
    a.e(f"v_and_b32 v{hi}, 0xffff0000, v{src}")

def ln_xform(a, regs, vm, vr, t0, t1):
    for r in regs:
        unpack2(a, t0, t1, r)
        a.e(f"v_sub_f32 v{t0}, v{t0}, v{vm}")
        a.e(f"v_sub_f32 v{t1}, v{t1}, v{vm}")
        a.e(f"v_cvt_pk_bf16_f32 v{r}, v{t0}, v{t1}")
        unpack2(a, t0, t1, r)
        a.e(f"v_mul_f32 v{t0}, v{t0}, v{vr}")
        a.e(f"v_mul_f32 v{t1}, v{t1}, v{vr}")
        a.e(f"v_cvt_pk_bf16_f32 v{r}, v{t0}, v{t1}")

def stats_finish(a, vs, vq, n, t):
    a.e(f"v_mul_f32 v{vs}, 0x{f32hex(1.0/n)}, v{vs}")
    a.e(f"v_mul_f32 v{vq}, 0x{f32hex(1.0/n)}, v{vq}")
    a.e(f"v_fma_f32 v{vq}, -v{vs}, v{vs}, v{vq}")
    a.e(f"v_max_f32 v{vq}, 0, v{vq}")
    a.e(f"v_cvt_pk_bf16_f32 v{t}, v{vs}, v{vq}")
    unpack2(a, vs, vq, t)
    a.e(f"v_add_f32 v{vq}, 0x{f32hex(1e-5)}, v{vq}")
    a.e(f"v_cvt_pk_bf16_f32 v{t}, v{vq}, v{vq}")
    a.e(f"v_lshlrev_b32 v{vq}, 16, v{t}")
    a.e(f"v_sqrt_f32 v{vq}, v{vq}")
    a.e("s_nop 0")
    a.e(f"v_cvt_pk_bf16_f32 v{t}, v{vq}, v{vq}")
    a.e(f"v_lshlrev_b32 v{vq}, 16, v{t}")
    a.e(f"v_rcp_f32 v{vq}, v{vq}")
    a.e("s_nop 0")

import struct
def f32hex(f):
    return "%08x" % struct.unpack("<I", struct.pack("<f", f))[0]

def gen_gemm(a, name, M, N, K, MT, NT, act, wt, lda, ldb, amode, bmode, epi):
    MC = M // MT; NC = N // NT; NWG = MC * NC
    MTW = MT // 64; NTW = NT // 64
    AS = 144; WSr = NT * 2 + 64
    ASZ = MT * AS; WSZ = 64 * WSr; BUF = ASZ + WSZ
    STOFF = 0
    LB = (MT * 8 if amode == 'ln' else 0) + (2048 * 8 if bmode == 'ln' else 0)
    lds = LB + 2 * BUF
    NK = K // 64
    NA = MT // 32
    NB = NT // 32
    cpr = NT // 8
    rpp = 256 // cpr
    lcpr = cpr.bit_length() - 1
    END = a.uniq("end")
    a.l.append(f".globl {name}\n.p2align 8\n.type {name},@function")
    a.lab(name)
    a.e(f"s_cmp_ge_u32 s2, {NWG}")
    a.e(f"s_cbranch_scc1 {END}")
    a.e(f"s_load_dwordx2 s[4:5], s[0:1], {KA[act[0]]}")
    a.e(f"s_load_dwordx2 s[8:9], s[0:1], {KA[wt[0]]}")
    a.e(f"s_load_dwordx2 s[12:13], s[0:1], {KA[epi['out'][0]]}")
    if 'aux' in epi: a.e(f"s_load_dwordx2 s[16:17], s[0:1], {KA[epi['aux'][0]]}")
    if 'aux2' in epi: a.e(f"s_load_dwordx2 s[20:21], s[0:1], {KA[epi['aux2'][0]]}")
    if 'aux3' in epi: a.e(f"s_load_dwordx2 s[48:49], s[0:1], {KA[epi['aux3'][0]]}")
    a.e(f"s_and_b32 s24, s2, {MC-1}")
    a.e(f"s_lshr_b32 s25, s2, {MC.bit_length()-1}")
    a.e(f"s_mul_i32 s26, s24, {MT}")
    a.e(f"s_mul_i32 s27, s25, {NT}")
    a.e("v_and_b32 v1, 63, v0")
    a.e("v_lshrrev_b32 v2, 6, v0")
    a.e("s_nop 0")
    a.e("v_readfirstlane_b32 s28, v2")
    a.e("s_waitcnt lgkmcnt(0)")
    srd(a, 4, act[0], act[1], act[2])
    srd(a, 8, wt[0], wt[1], wt[2])
    srd(a, 12, *epi['out'])
    if 'aux' in epi: srd(a, 16, *epi['aux'])
    if 'aux2' in epi: srd(a, 20, *epi['aux2'])
    if 'aux3' in epi: srd(a, 48, *epi['aux3'])
    a.e("s_and_b32 s29, s28, 1")
    a.e("s_lshr_b32 s30, s28, 1")
    a.e("v_lshrrev_b32 v3, 3, v0")
    a.e("v_and_b32 v9, 7, v0")
    a.e(f"v_mul_u32_u24 v5, {AS}, v3")
    a.e(f"v_mul_u32_u24 v3, {lda}, v3")
    a.e("v_lshl_add_u32 v3, v9, 4, v3")
    a.e("v_lshl_add_u32 v5, v9, 4, v5")
    a.e(f"v_add_u32 v5, {LB}, v5")
    a.e(f"v_add_u32 v6, {BUF}, v5")
    a.e(f"v_lshrrev_b32 v4, {lcpr}, v0")
    a.e(f"v_and_b32 v9, {cpr-1}, v0")
    a.e(f"v_mul_u32_u24 v7, {WSr}, v4")
    if bmode == 'ln':
        a.e("v_lshlrev_b32 v31, 3, v4")
        a.e(f"v_add_u32 v31, {STOFF}, v31")
    a.e(f"v_mul_u32_u24 v4, {ldb}, v4")
    a.e("v_lshl_add_u32 v4, v9, 4, v4")
    a.e("v_lshl_add_u32 v7, v9, 4, v7")
    a.e(f"v_add_u32 v7, {ASZ+LB}, v7")
    a.e(f"v_add_u32 v8, {BUF}, v7")
    a.e("v_and_b32 v9, 31, v1")
    a.e(f"s_mul_i32 s31, s29, {MT//2}")
    a.e("v_add_u32 v9, s31, v9")
    a.e(f"v_mul_u32_u24 v10, {AS}, v9")
    a.e("v_lshrrev_b32 v14, 5, v1")
    a.e("v_lshl_add_u32 v10, v14, 4, v10")
    a.e(f"v_add_u32 v10, {LB}, v10")
    a.e(f"v_add_u32 v11, {BUF}, v10")
    a.e("v_bfe_u32 v15, v1, 2, 2")
    a.e("v_lshl_add_u32 v15, v14, 3, v15")
    a.e(f"v_mul_u32_u24 v12, {WSr}, v15")
    a.e("v_bfe_u32 v15, v1, 4, 1")
    a.e("v_lshlrev_b32 v15, 5, v15")
    a.e("v_and_b32 v16, 3, v1")
    a.e("v_lshl_add_u32 v15, v16, 3, v15")
    a.e(f"s_mul_i32 s31, s30, {NT}")
    a.e("v_add3_u32 v12, v12, v15, s31")
    a.e(f"v_add_u32 v12, {ASZ+LB}, v12")
    a.e(f"v_add_u32 v13, {BUF}, v12")
    a.e(f"s_mul_i32 s32, s26, {lda}")
    for i in range(1, NA): a.e(f"s_add_u32 s{32+i}, s32, {32*i*lda}")
    a.e("s_lshl_b32 s36, s27, 1")
    for i in range(1, NB): a.e(f"s_add_u32 s{36+i}, s36, {rpp*i*ldb}")
    ACC = 64
    SA = 48
    SB = 128
    FA = [32, 144]
    FW = [40, 152]
    STM = 20
    T0, T1 = 28, 29
    if amode == 'ln':
        rpw = MT // 4
        a.e("v_lshrrev_b32 v17, 2, v1")
        a.e(f"s_mul_i32 s31, s28, {rpw}")
        a.e("v_add_u32 v17, s31, v17")
        a.e("v_and_b32 v18, 3, v1")
        a.e("v_lshlrev_b32 v18, 4, v18")
        a.e(f"v_mov_b32 v19, 0x3f803f80")
        for grp in range(rpw // 16):
            a.e(f"v_mul_u32_u24 v30, {lda}, v17")
            a.e("v_add_u32 v30, v30, v18")
            for j in range(16):
                a.e(f"buffer_load_dwordx4 v[{ACC+4*j}:{ACC+4*j+3}], v30, s[4:7], s32 offen offset:{64*j}")
            a.e(f"v_mov_b32 v{T0}, 0")
            a.e(f"v_mov_b32 v{T1}, 0")
            for j in range(16):
                a.e(f"s_waitcnt vmcnt({15-j})")
                for d in range(4):
                    r = ACC + 4*j + d
                    a.e(f"v_dot2_f32_bf16 v{T0}, v{r}, v19, v{T0}")
                    a.e(f"v_dot2_f32_bf16 v{T1}, v{r}, v{r}, v{T1}")
            a.e("s_nop 3")
            for qp in ("[1,0,3,2]", "[2,3,0,1]"):
                a.e(f"v_add_f32_dpp v{T0}, v{T0}, v{T0} quad_perm:{qp} row_mask:0xf bank_mask:0xf")
                a.e(f"v_add_f32_dpp v{T1}, v{T1}, v{T1} quad_perm:{qp} row_mask:0xf bank_mask:0xf")
                a.e("s_nop 1")
            stats_finish(a, T0, T1, 512, 30)
            a.e("v_lshlrev_b32 v30, 3, v17")
            a.e(f"ds_write_b64 v30, v[{T0}:{T1}] offset:{STOFF}")
            a.e("v_add_u32 v17, 16, v17")
        a.e("s_waitcnt lgkmcnt(0)")
        a.e("s_barrier")
        a.e("v_lshrrev_b32 v30, 3, v0")
        a.e("v_lshlrev_b32 v30, 3, v30")
        for i in range(NA):
            a.e(f"ds_read_b64 v[{STM+2*i}:{STM+2*i+1}], v30 offset:{STOFF + 32*8*i}")
        a.e("s_waitcnt lgkmcnt(0)")
    if bmode == 'ln':
        a.e(f"v_mul_u32_u24 v30, 112, v0")
        for rr in range(8):
            for j in range(7):
                a.e(f"buffer_load_dwordx4 v[{ACC+4*j}:{ACC+4*j+3}], v30, s[20:23], 0 offen offset:{16*j}")
            a.e("s_waitcnt vmcnt(0)")
            a.e(f"v_add_f32 v{T0}, v{ACC}, v{ACC+2}")
            a.e(f"v_add_f32 v{T1}, v{ACC+1}, v{ACC+3}")
            for j in range(1, 7):
                a.e(f"v_add_f32 v{T0}, v{T0}, v{ACC+4*j}")
                a.e(f"v_add_f32 v{T1}, v{T1}, v{ACC+4*j+1}")
                a.e(f"v_add_f32 v{T0}, v{T0}, v{ACC+4*j+2}")
                a.e(f"v_add_f32 v{T1}, v{T1}, v{ACC+4*j+3}")
            stats_finish(a, T0, T1, 896, 17)
            a.e("v_lshlrev_b32 v17, 3, v0")
            a.e(f"ds_write_b64 v17, v[{T0}:{T1}] offset:{STOFF + 2048*rr}")
            a.e(f"v_add_u32 v30, {112*256}, v30")
        a.e("s_waitcnt lgkmcnt(0)")
        a.e("s_barrier")
    for r in range(ACC, ACC + 16*MTW*NTW): a.e(f"v_mov_b32 v{r}, 0")

    def loads():
        for i in range(NA):
            a.e(f"buffer_load_dwordx4 v[{SA+4*i}:{SA+4*i+3}], v3, s[4:7], s{32+i} offen")
        for i in range(NB):
            a.e(f"buffer_load_dwordx4 v[{SB+4*i}:{SB+4*i+3}], v4, s[8:11], s{36+i} offen")
        if bmode == 'ln':
            for i in range(NB):
                a.e(f"ds_read_b64 v[{STM+2*i}:{STM+2*i+1}], v31 offset:{rpp*8*i}")
            a.e("v_add_u32 v31, 512, v31")
        for i in range(NA): a.e(f"s_add_u32 s{32+i}, s{32+i}, 128")
        for i in range(NB): a.e(f"s_add_u32 s{36+i}, s{36+i}, {64*ldb}")
    def stage(buf):
        a.e("s_waitcnt vmcnt(0) lgkmcnt(0)")
        if amode == 'ln':
            for i in range(NA):
                ln_xform(a, range(SA+4*i, SA+4*i+4), STM+2*i, STM+2*i+1, T0, T1)
        if bmode == 'ln':
            for i in range(NB):
                ln_xform(a, range(SB+4*i, SB+4*i+4), STM+2*i, STM+2*i+1, T0, T1)
        for i in range(NA):
            a.e(f"ds_write_b128 v{5+buf}, v[{SA+4*i}:{SA+4*i+3}] offset:{32*AS*i}")
        for i in range(NB):
            a.e(f"ds_write_b128 v{7+buf}, v[{SB+4*i}:{SB+4*i+3}] offset:{rpp*WSr*i}")
    def frag_reads(buf, ks, st):
        for mt in range(MTW):
            a.e(f"ds_read_b128 v[{FA[st]+4*mt}:{FA[st]+4*mt+3}], v{10+buf} offset:{mt*32*AS + ks*32}")
        for nt in range(NTW):
            a.e(f"ds_read_b64_tr_b16 v[{FW[st]+4*nt}:{FW[st]+4*nt+1}], v{12+buf} offset:{ks*16*WSr + nt*64}")
            a.e(f"ds_read_b64_tr_b16 v[{FW[st]+4*nt+2}:{FW[st]+4*nt+3}], v{12+buf} offset:{ks*16*WSr + nt*64 + 4*WSr}")
    NRD = MTW + 2*NTW
    def compute(buf, swap):
        frag_reads(buf, 0, 0)
        for ks in range(4):
            st = ks & 1
            if ks < 3:
                frag_reads(buf, ks+1, st ^ 1)
                a.e(f"s_waitcnt lgkmcnt({NRD})")
            else:
                a.e("s_waitcnt lgkmcnt(0)")
            for nt in range(NTW):
                for mt in range(MTW):
                    acc = ACC + 16*(nt*MTW + mt)
                    fa = f"v[{FA[st]+4*mt}:{FA[st]+4*mt+3}]"; fw = f"v[{FW[st]+4*nt}:{FW[st]+4*nt+3}]"
                    if swap: a.e(f"v_mfma_f32_32x32x16_bf16 v[{acc}:{acc+15}], {fa}, {fw}, v[{acc}:{acc+15}]")
                    else:    a.e(f"v_mfma_f32_32x32x16_bf16 v[{acc}:{acc+15}], {fw}, {fa}, v[{acc}:{acc+15}]")
    def mainloop(swap):
        loads(); stage(0); loads()
        a.e("s_waitcnt lgkmcnt(0)")
        a.e("s_barrier")
        if NK > 2:
            a.e(f"s_mov_b32 s40, {NK//2 - 1}")
            L = a.uniq("loop")
            a.lab(L)
            for buf in range(2):
                compute(buf, swap); stage(buf ^ 1); loads()
                a.e("s_waitcnt lgkmcnt(0)")
                a.e("s_barrier")
            a.e("s_sub_u32 s40, s40, 1")
            a.e("s_cmp_lg_u32 s40, 0")
            a.e(f"s_cbranch_scc1 {L}")
        compute(0, swap); stage(1)
        a.e("s_waitcnt lgkmcnt(0)")
        a.e("s_barrier")
        compute(1, swap)
        a.e("s_nop 15")
    kind = epi['kind']
    if kind == 'qkv':
        LV = a.uniq("vpath")
        a.e("s_cmp_ge_u32 s25, 8")
        a.e(f"s_cbranch_scc1 {LV}")
        mainloop(False)
        a.e("v_lshlrev_b32 v17, 5, v9")
        a.e("v_lshl_add_u32 v17, v14, 3, v17")
        a.e("s_lshl_b32 s31, s30, 18")
        a.e("v_add_u32 v17, s31, v17")
        a.e("s_lshr_b32 s41, s25, 2")
        a.e("s_lshl_b32 s41, s41, 21")
        a.e("s_and_b32 s42, s25, 3")
        a.e("s_lshl_b32 s42, s42, 19")
        a.e("s_add_u32 s41, s41, s42")
        a.e("s_lshl_b32 s42, s26, 5")
        a.e("s_add_u32 s41, s41, s42")
        for nt in range(NTW):
            for mt in range(MTW):
                acc = ACC + 16*(nt*MTW + mt)
                for rq in range(4):
                    r = acc + 4*rq
                    a.e(f"v_cvt_pk_bf16_f32 v{T0}, v{r}, v{r+1}")
                    a.e(f"v_cvt_pk_bf16_f32 v{T1}, v{r+2}, v{r+3}")
                    a.e(f"s_add_u32 s42, s41, {mt*1024 + (2*nt + (rq>>1))*65536}")
                    a.e(f"buffer_store_dwordx2 v[{T0}:{T1}], v17, s[12:15], s42 offen offset:{(rq&1)*16}")
                    a.e("s_nop 1")
        a.e(f"s_branch {END}")
        a.lab(LV)
        mainloop(True)
        a.e("v_and_b32 v17, 31, v1")
        a.e("s_lshl_b32 s31, s30, 6")
        a.e("v_add_u32 v17, s31, v17")
        a.e("v_lshlrev_b32 v17, 12, v17")
        a.e("v_lshl_add_u32 v17, v14, 3, v17")
        a.e("s_lshl_b32 s31, s29, 7")
        a.e("v_add_u32 v17, s31, v17")
        a.e("s_sub_u32 s41, s27, 1024")
        a.e("s_lshl_b32 s41, s41, 12")
        a.e(f"s_add_u32 s41, s41, {WS_VT}")
        a.e("s_lshl_b32 s42, s26, 1")
        a.e("s_add_u32 s41, s41, s42")
        for nt in range(NTW):
            for mt in range(MTW):
                acc = ACC + 16*(nt*MTW + mt)
                for rq in range(4):
                    r = acc + 4*rq
                    a.e(f"v_cvt_pk_bf16_f32 v{T0}, v{r}, v{r+1}")
                    a.e(f"v_cvt_pk_bf16_f32 v{T1}, v{r+2}, v{r+3}")
                    a.e(f"s_add_u32 s42, s41, {nt*32*4096 + mt*64}")
                    a.e(f"buffer_store_dwordx2 v[{T0}:{T1}], v17, s[12:15], s42 offen offset:{rq*16}")
                    a.e("s_nop 1")
    else:
        mainloop(False)
        ldo = epi['ldo']
        a.e(f"v_mul_u32_u24 v17, {ldo}, v9")
        a.e("v_lshl_add_u32 v17, v14, 3, v17")
        a.e(f"s_mul_i32 s31, s30, {NT}")
        a.e("v_add_u32 v17, s31, v17")
        a.e(f"s_mul_i32 s41, s26, {ldo}")
        a.e("s_lshl_b32 s42, s27, 1")
        a.e("s_add_u32 s41, s41, s42")
        if kind in ('res', 'gate'):
            lda2 = epi['ldaux']
            a.e(f"v_mul_u32_u24 v18, {lda2}, v9")
            a.e("v_lshl_add_u32 v18, v14, 3, v18")
            a.e("v_add_u32 v18, s31, v18")
            a.e(f"s_mul_i32 s43, s26, {lda2}")
            a.e("s_add_u32 s43, s43, s42")
        if kind == 'gate':
            a.e("v_add_u32 v19, s26, v9")
            a.e("v_lshlrev_b32 v19, 1, v19")
            for mt in range(MTW):
                a.e(f"buffer_load_ushort v{20+mt}, v19, s[48:51], 0 offen offset:{mt*64}")
        if kind == 'gelu':
            for mt in range(MTW):
                a.e(f"v_mov_b32 v{20+2*mt}, 0")
                a.e(f"v_mov_b32 v{21+2*mt}, 0")
        E = 32
        for mt in range(MTW):
            a.e(f"s_add_u32 s42, s41, {mt*32*ldo}")
            if kind in ('res', 'gate'):
                a.e(f"s_add_u32 s44, s43, {mt*32*lda2}")
                for nt in range(NTW):
                    for rq in range(4):
                        a.e(f"buffer_load_dwordx2 v[{SA+2*(4*nt+rq)}:{SA+2*(4*nt+rq)+1}], v18, s[16:19], s44 offen offset:{nt*64+rq*16}")
                a.e("s_waitcnt vmcnt(0)")
                if kind == 'gate':
                    a.e(f"v_lshlrev_b32 v{20+mt}, 16, v{20+mt}")
            for nt in range(NTW):
                acc = ACC + 16*(nt*MTW + mt)
                for rq in range(4):
                    r = acc + 4*rq
                    a.e(f"v_cvt_pk_bf16_f32 v{T0}, v{r}, v{r+1}")
                    a.e(f"v_cvt_pk_bf16_f32 v{T1}, v{r+2}, v{r+3}")
                    unpack2(a, E, E+1, T0); unpack2(a, E+2, E+3, T1)
                    if kind == 'res':
                        x0 = SA + 2*(4*nt+rq)
                        unpack2(a, E+4, E+5, x0); unpack2(a, E+6, E+7, x0+1)
                        for j in range(4): a.e(f"v_add_f32 v{E+j}, v{E+j}, v{E+4+j}")
                    elif kind == 'gate':
                        x0 = SA + 2*(4*nt+rq)
                        for j in range(4): a.e(f"v_add_f32 v{E+j}, v{E+j}, v{20+mt}")
                        a.e(f"v_cvt_pk_bf16_f32 v{T0}, v{E}, v{E+1}")
                        a.e(f"v_cvt_pk_bf16_f32 v{T1}, v{E+2}, v{E+3}")
                        unpack2(a, E, E+1, T0); unpack2(a, E+2, E+3, T1)
                        unpack2(a, E+4, E+5, x0); unpack2(a, E+6, E+7, x0+1)
                        for j in range(4): a.e(f"v_mul_f32 v{E+j}, v{E+j}, v{E+4+j}")
                    elif kind == 'gelu':
                        c1 = -2.0 * 1.4426950408889634 * 0.7978845608028654
                        for j in range(4):
                            a.e(f"v_mul_f32 v{E+4+j}, v{E+j}, v{E+j}")
                            a.e(f"v_mul_f32 v{E+4+j}, 0x{f32hex(0.044715*c1)}, v{E+4+j}")
                            a.e(f"v_add_f32 v{E+4+j}, 0x{f32hex(c1)}, v{E+4+j}")
                            a.e(f"v_mul_f32 v{E+4+j}, v{E+4+j}, v{E+j}")
                            a.e(f"v_exp_f32 v{E+4+j}, v{E+4+j}")
                        a.e("s_nop 0")
                        for j in range(4): a.e(f"v_add_f32 v{E+4+j}, 1.0, v{E+4+j}")
                        for j in range(4): a.e(f"v_rcp_f32 v{E+4+j}, v{E+4+j}")
                        a.e("s_nop 0")
                        for j in range(4): a.e(f"v_mul_f32 v{E+j}, v{E+j}, v{E+4+j}")
                    a.e(f"v_cvt_pk_bf16_f32 v{T0}, v{E}, v{E+1}")
                    a.e(f"v_cvt_pk_bf16_f32 v{T1}, v{E+2}, v{E+3}")
                    a.e(f"buffer_store_dwordx2 v[{T0}:{T1}], v17, s[12:15], s42 offen offset:{nt*64+rq*16}")
                    if kind == 'gelu':
                        unpack2(a, E, E+1, T0); unpack2(a, E+2, E+3, T1)
                        for j in range(4):
                            a.e(f"v_add_f32 v{20+2*mt}, v{20+2*mt}, v{E+j}")
                            a.e(f"v_fmac_f32 v{21+2*mt}, v{E+j}, v{E+j}")
                    else:
                        a.e("s_nop 1")
        if kind == 'gelu':
            a.e("s_cmp_lt_u32 s25, 7")
            a.e(f"s_cbranch_scc1 {END}")
            a.e("s_sub_u32 s42, s25, 7")
            a.e("s_lshl_b32 s42, s42, 1")
            a.e("s_add_u32 s42, s42, s30")
            a.e("s_lshl_b32 s42, s42, 3")
            a.e("v_add_u32 v19, s26, v9")
            a.e("v_mul_u32_u24 v19, 112, v19")
            for mt in range(MTW):
                a.e(f"v_mov_b32 v{E}, v{20+2*mt}")
                a.e(f"v_mov_b32 v{E+1}, v{21+2*mt}")
                a.e("s_nop 1")
                a.e(f"v_permlane32_swap_b32 v{E}, v{20+2*mt}")
                a.e(f"v_permlane32_swap_b32 v{E+1}, v{21+2*mt}")
                a.e(f"v_add_f32 v{E}, v{E}, v{20+2*mt}")
                a.e(f"v_add_f32 v{E+1}, v{E+1}, v{21+2*mt}")
                a.e(f"buffer_store_dwordx2 v[{E}:{E+1}], v19, s[20:23], s42 offen offset:{mt*32*112}")
                a.e("s_nop 1")
    a.lab(END)
    a.e("s_endpgm")
    return NWG, lds, 160

def main():
    a = Asm()
    launches = []
    kds = []
    def add(name, nwg, lds, nv):
        launches.append(f"; @launch kernel={name} grid=({nwg},1,1) block=(256,1,1) lds={lds}")
        kds.append(kd(name, nv))
    r = gen_gemm(a, "k1_qkv_kernel", S, 1536, 512, 128, 128, ('x', 0, 2*MB), ('wqkv', 0, 512*1536*2), 1024, 3072, 'ln', 'plain',
                 dict(kind='qkv', out=('ws', WS_Q, 6*MB)))
    add("k1_qkv_kernel", *r)
    import attn
    r = attn.gen_attn(a, "k2_attn_kernel")
    add("k2_attn_kernel", *r)
    r = gen_gemm(a, "k3_wo_kernel", S, 512, 512, 64, 64, ('ws', WS_O, 2*MB), ('wo', 0, 512*512*2), 1024, 1024, 'plain', 'plain',
                 dict(kind='res', out=('ws', WS_H, 2*MB), ldo=1024, aux=('x', 0, 2*MB), ldaux=1024))
    add("k3_wo_kernel", *r)
    r = gen_gemm(a, "k4_win_kernel", S, 1792, 512, 128, 128, ('ws', WS_H, 2*MB), ('w_in', 0, 512*1792*2), 1024, 3584, 'ln', 'plain',
                 dict(kind='gelu', out=('ws', WS_Z, S*1792*2), ldo=3584, aux2=('ws', WS_ST, S*112)))
    add("k4_win_kernel", *r)
    r = gen_gemm(a, "k5_sp_kernel", S, 896, 2048, 64, 128, ('w_sp', 0, S*S*2), ('ws', WS_Z + 896*2, S*1792*2 - 896*2), 4096, 3584, 'plain', 'ln',
                 dict(kind='gate', out=('ws', WS_Y, S*896*2), ldo=1792, aux=('ws', WS_Z, S*1792*2), ldaux=3584, aux2=('ws', WS_ST, S*112), aux3=('b_sp', 0, S*2)))
    add("k5_sp_kernel", *r)
    r = gen_gemm(a, "k6_out_kernel", S, 512, 896, 64, 64, ('ws', WS_Y, S*896*2), ('w_out', 0, 896*512*2), 1792, 1024, 'plain', 'plain',
                 dict(kind='res', out=('out', 0, 2*MB), ldo=1024, aux=('ws', WS_H, 2*MB), ldaux=1024))
    add("k6_out_kernel", *r)
    hdr = open(f"cdna_kernels/{NAME}.s.ref").read().split("; @launch")[0]
    out = hdr + "\n".join(launches) + "\n" + '.amdgcn_target "amdgcn-amd-amdhsa--gfx950"\n.text\n' + a.text() + "".join(kds)
    open(sys.argv[1] if len(sys.argv) > 1 else f"cdna_kernels/{NAME}.s", "w").write(out)

if __name__ == "__main__":
    sys.path.insert(0, "dev")
    main()
```

```python
from gen2 import *
def gen_attn(a, name):
    NWG = 32 * 32
    KB = 0; VB = 320 * 32; VROW = 41 * 16
    lds = VB + 11 * 1024
    END = a.uniq("end")
    a.l.append(f".globl {name}\n.p2align 8\n.type {name},@function")
    a.lab(name)
    a.e(f"s_cmp_ge_u32 s2, {NWG}")
    a.e(f"s_cbranch_scc1 {END}")
    a.e(f"s_load_dwordx2 s[4:5], s[0:1], {KA['ws']}")
    a.e("s_and_b32 s24, s2, 31")
    a.e("s_lshr_b32 s25, s2, 5")
    a.e("v_and_b32 v1, 63, v0")
    a.e("v_lshrrev_b32 v2, 6, v0")
    a.e("s_nop 0")
    a.e("v_readfirstlane_b32 s28, v2")
    a.e("s_waitcnt lgkmcnt(0)")
    a.e("s_mov_b32 s8, s4"); a.e("s_mov_b32 s9, s5")
    a.e("s_mov_b32 s12, s4"); a.e("s_mov_b32 s13, s5")
    a.e("s_mov_b32 s16, s4"); a.e("s_mov_b32 s17, s5")
    a.e("s_lshl_b32 s26, s25, 16")
    a.e(f"s_add_u32 s4, s4, s26"); a.e("s_addc_u32 s5, s5, 0")
    a.e("s_mov_b32 s6, 0x10000"); a.e("s_mov_b32 s7, 0x00020000")
    a.e(f"s_add_u32 s27, s26, {WS_K}")
    a.e(f"s_add_u32 s8, s8, s27"); a.e("s_addc_u32 s9, s9, 0")
    a.e("s_mov_b32 s10, 0x10000"); a.e("s_mov_b32 s11, 0x00020000")
    a.e(f"s_add_u32 s27, s26, {WS_VT}")
    a.e(f"s_add_u32 s12, s12, s27"); a.e("s_addc_u32 s13, s13, 0")
    a.e("s_mov_b32 s14, 0x10000"); a.e("s_mov_b32 s15, 0x00020000")
    srd(a, 16, 'ws', WS_O, 2*MB)
    a.e("s_lshl_b32 s29, s24, 6")
    a.e("s_sub_i32 s31, s29, 256")
    a.e("v_lshlrev_b32 v3, 4, v1")
    a.e("s_lshl_b32 s32, s31, 5")
    a.e("s_lshl_b32 s33, s28, 10")
    a.e("s_add_u32 s32, s32, s33")
    a.e("v_add_u32 v4, s32, v3")
    for i in range(3):
        L = a.uniq("sk")
        if i == 2:
            a.e("s_cmp_ge_u32 s28, 2"); a.e(f"s_cbranch_scc1 {L}")
        a.e(f"s_add_u32 m0, s33, {KB + 4096*i}")
        a.e("s_nop 0")
        a.e(f"buffer_load_dwordx4 v4, s[8:11], 0 offen lds")
        a.e("v_add_u32 v4, 0x1000, v4")
        if i == 2: a.lab(L)
    a.e("s_lshl_b32 s34, s31, 1")
    a.e(f"s_mov_b32 s35, {(1 << 32) // 41 + 1}")
    for i in range(3):
        L = a.uniq("sv")
        if i == 2:
            a.e("s_cmp_ge_u32 s28, 3"); a.e(f"s_cbranch_scc1 {L}")
        a.e(f"s_lshl_b32 s36, s28, 6")
        a.e(f"v_add_u32 v5, {256*i}, v1")
        a.e("v_add_u32 v5, s36, v5")
        a.e("v_mul_hi_u32 v6, v5, s35")
        a.e("v_mul_u32_u24 v7, 41, v6")
        a.e("v_sub_u32 v7, v5, v7")
        a.e("v_lshlrev_b32 v8, 12, v6")
        a.e("v_lshl_add_u32 v8, v7, 4, v8")
        a.e("v_add_u32 v8, s34, v8")
        a.e("v_cmp_lt_u32 vcc, 15, v6")
        a.e("s_nop 1")
        a.e("v_cndmask_b32 v8, v8, -1, vcc")
        a.e(f"s_add_u32 m0, s33, {VB + 4096*i}")
        a.e("s_nop 0")
        a.e(f"buffer_load_dwordx4 v8, s[12:15], 0 offen lds")
        if i == 2: a.lab(L)
    a.e("s_lshl_b32 s30, s28, 4")
    a.e("s_add_u32 s29, s29, s30")
    a.e("s_sub_i32 s31, s29, 256")
    a.e("v_and_b32 v2, 15, v1")
    a.e("v_lshrrev_b32 v3, 4, v1")
    a.e("v_lshlrev_b32 v4, 5, v2")
    a.e("v_lshl_add_u32 v4, v3, 3, v4")
    a.e("s_lshl_b32 s30, s29, 5")
    a.e("buffer_load_dwordx2 v[6:7], v4, s[4:7], s30 offen")
    a.e("s_lshl_b32 s36, s28, 9")
    a.e("v_add_u32 v4, s36, v4")
    a.e(f"v_mul_u32_u24 v5, {VROW}, v2")
    a.e("v_lshl_add_u32 v5, v3, 3, v5")
    a.e("s_lshl_b32 s36, s28, 5")
    a.e(f"s_add_u32 s36, s36, {VB}")
    a.e("v_add_u32 v5, s36, v5")
    KF = 20; SC = 56
    for r in range(SC, SC+68): a.e(f"v_mov_b32 v{r}, 0")
    for r in range(8, 12): a.e(f"v_mov_b32 v{r}, 0")
    a.e("v_mov_b32 v12, 0xff800000")
    a.e("v_lshlrev_b32 v13, 2, v3")
    a.e("v_sub_u32 v13, v13, v2")
    a.e("s_waitcnt vmcnt(0)")
    a.e("s_barrier")
    for j in range(17):
        a.e(f"ds_read_b64 v[{KF+2*j}:{KF+2*j+1}], v4 offset:{512*j}")
    for j in range(17):
        a.e(f"s_waitcnt lgkmcnt({min(15, 16-j)})")
        a.e(f"v_mfma_f32_16x16x16_bf16 v[{SC+4*j}:{SC+4*j+3}], v[{KF+2*j}:{KF+2*j+1}], v[6:7], v[{SC+4*j}:{SC+4*j+3}]")
    a.e("s_nop 7")
    for r in range(4):
        a.e(f"v_cmp_gt_i32 vcc, {-r}, v13")
        a.e(f"v_cmp_le_i32 s[34:35], {-r}, v13")
        a.e(f"v_cmp_eq_i32 s[36:37], {-r}, v13")
        a.e("s_nop 1")
        a.e("s_or_b64 s[38:39], vcc, s[36:37]")
        a.e(f"v_cndmask_b32 v{SC+r}, v{SC+r}, v12, s[38:39]")
        a.e("s_andn2_b64 s[38:39], s[34:35], s[36:37]")
        a.e(f"v_cndmask_b32 v{SC+64+r}, v{SC+64+r}, v12, s[38:39]")
    for j in range(16):
        L = a.uniq("ok")
        a.e(f"s_add_i32 s32, s31, {16*j}")
        a.e("s_cmp_ge_i32 s32, 0")
        a.e(f"s_cbranch_scc1 {L}")
        for r in range(4): a.e(f"v_mov_b32 v{SC+4*j+r}, v12")
        a.lab(L)
    a.e(f"v_max3_f32 v14, v{SC}, v{SC+1}, v{SC+2}")
    a.e(f"v_max3_f32 v15, v{SC+3}, v{SC+4}, v{SC+5}")
    rr = list(range(SC+6, SC+68))
    i = 0
    while len(rr) >= 2:
        t = 14 + (i & 1); i += 1
        a.e(f"v_max3_f32 v{t}, v{t}, v{rr[0]}, v{rr[1]}"); rr = rr[2:]
    a.e("v_max_f32 v14, v14, v15")
    a.e("v_mov_b32 v15, v14")
    a.e("s_nop 1")
    a.e("v_permlane32_swap_b32 v15, v14")
    a.e("v_max_f32 v14, v14, v15")
    a.e("v_mov_b32 v15, v14")
    a.e("s_nop 1")
    a.e("v_permlane16_swap_b32 v15, v14")
    a.e("v_max_f32 v14, v14, v15")
    c = 0.25 * 1.4426950408889634
    a.e(f"s_mov_b32 s40, 0x{f32hex(c)}")
    a.e("v_mul_f32 v14, s40, v14")
    a.e("v_mov_b32 v16, 0")
    a.e("v_mov_b32 v17, 0")
    VS = [18, 54]
    for j in range(17):
        r = SC + 4*j
        for k in range(4): a.e(f"v_fma_f32 v{r+k}, v{r+k}, s40, -v14")
        for k in range(4): a.e(f"v_exp_f32 v{r+k}, v{r+k}")
        a.e(f"ds_read_b64 v[{VS[j&1]}:{VS[j&1]+1}], v5 offset:{32*j}")
        a.e(f"v_add_f32 v16, v16, v{r}")
        a.e(f"v_add_f32 v17, v17, v{r+1}")
        a.e(f"v_add_f32 v16, v16, v{r+2}")
        a.e(f"v_add_f32 v17, v17, v{r+3}")
        a.e(f"v_cvt_pk_bf16_f32 v{KF+2*j}, v{r}, v{r+1}")
        a.e(f"v_cvt_pk_bf16_f32 v{KF+2*j+1}, v{r+2}, v{r+3}")
        a.e("s_waitcnt lgkmcnt(0)")
        a.e("s_nop 1")
        a.e(f"v_mfma_f32_16x16x16_bf16 v[8:11], v[{VS[j&1]}:{VS[j&1]+1}], v[{KF+2*j}:{KF+2*j+1}], v[8:11]")
    a.e("v_add_f32 v16, v16, v17")
    a.e("v_mov_b32 v15, v16")
    a.e("s_nop 1")
    a.e("v_permlane32_swap_b32 v15, v16")
    a.e("v_add_f32 v16, v16, v15")
    a.e("v_mov_b32 v15, v16")
    a.e("s_nop 1")
    a.e("v_permlane16_swap_b32 v15, v16")
    a.e("v_add_f32 v16, v16, v15")
    a.e("v_rcp_f32 v16, v16")
    a.e("s_nop 7")
    for r in range(4): a.e(f"v_mul_f32 v{8+r}, v{8+r}, v16")
    a.e("v_cvt_pk_bf16_f32 v8, v8, v9")
    a.e("v_cvt_pk_bf16_f32 v9, v10, v11")
    a.e("v_lshlrev_b32 v4, 10, v2")
    a.e("v_lshl_add_u32 v4, v3, 3, v4")
    a.e("s_lshl_b32 s30, s29, 10")
    a.e("s_lshl_b32 s31, s25, 5")
    a.e("s_add_u32 s30, s30, s31")
    a.e("buffer_store_dwordx2 v[8:9], v4, s[16:19], s30 offen")
    a.lab(END)
    a.e("s_endpgm")
    return NWG, lds, 124
```

```python
import sys, struct
NAME = "sequential_preLN__sliding_block__mixer_gmlp__prompt"
MB = 1 << 20
WS_Q, WS_K, WS_VT, WS_O, WS_H, WS_Z, WS_Y = 0, 2*MB, 4*MB, 6*MB, 8*MB, 10*MB, 18*MB
WS_L1, WS_L2, WS_ZN = 22*MB, 24*MB, 26*MB
KA = dict(x=0, wqkv=8, wo=16, w_in=32, w_sp=40, b_sp=48, w_out=56, out=64, dbg=72, ws=80)
S, D = 2048, 512

class Asm:
    def __init__(self):
        self.l = []; self.n = 0
    def e(self, s): self.l.append("    " + s)
    def lab(self, s): self.l.append(s + ":")
    def uniq(self, p):
        self.n += 1
        return f"L_{p}_{self.n}"
    def text(self): return "\n".join(self.l) + "\n"

def f32hex(f): return "%08x" % struct.unpack("<I", struct.pack("<f", f))[0]

def srd(a, sreg, karg, off, size):
    if off:
        a.e(f"s_add_u32 s{sreg}, s{sreg}, 0x{off:x}")
        a.e(f"s_addc_u32 s{sreg+1}, s{sreg+1}, 0")
    a.e(f"s_mov_b32 s{sreg+2}, 0x{size:x}")
    a.e(f"s_mov_b32 s{sreg+3}, 0x00020000")

def kd(name, nvgpr, nsgpr=96):
    nv = (nvgpr + 7) // 8 * 8
    return f""".section .rodata,"a"
.p2align 6
.amdhsa_kernel {name}
  .amdhsa_next_free_vgpr {nv}
  .amdhsa_next_free_sgpr {nsgpr}
  .amdhsa_accum_offset {nv}
  .amdhsa_group_segment_fixed_size 0
  .amdhsa_kernarg_size 88
  .amdhsa_user_sgpr_count 2
  .amdhsa_user_sgpr_kernarg_segment_ptr 1
  .amdhsa_system_sgpr_workgroup_id_x 1
.end_amdhsa_kernel
.text
"""

def unpack2(a, lo, hi, src):
    a.e(f"v_lshlrev_b32 v{lo}, 16, v{src}")
    a.e(f"v_and_b32 v{hi}, 0xffff0000, v{src}")

def ln_xform(a, regs, vm, vr, t0, t1):
    for r in regs:
        unpack2(a, t0, t1, r)
        a.e(f"v_sub_f32 v{t0}, v{t0}, v{vm}")
        a.e(f"v_sub_f32 v{t1}, v{t1}, v{vm}")
        a.e(f"v_cvt_pk_bf16_f32 v{r}, v{t0}, v{t1}")
        unpack2(a, t0, t1, r)
        a.e(f"v_mul_f32 v{t0}, v{t0}, v{vr}")
        a.e(f"v_mul_f32 v{t1}, v{t1}, v{vr}")
        a.e(f"v_cvt_pk_bf16_f32 v{r}, v{t0}, v{t1}")

def stats_finish(a, vs, vq, n, t):
    a.e(f"v_mul_f32 v{vs}, 0x{f32hex(1.0/n)}, v{vs}")
    a.e(f"v_mul_f32 v{vq}, 0x{f32hex(1.0/n)}, v{vq}")
    a.e(f"v_fma_f32 v{vq}, -v{vs}, v{vs}, v{vq}")
    a.e(f"v_max_f32 v{vq}, 0, v{vq}")
    a.e(f"v_cvt_pk_bf16_f32 v{t}, v{vs}, v{vq}")
    unpack2(a, vs, vq, t)
    a.e(f"v_add_f32 v{vq}, 0x{f32hex(1e-5)}, v{vq}")
    a.e(f"v_cvt_pk_bf16_f32 v{t}, v{vq}, v{vq}")
    a.e(f"v_lshlrev_b32 v{vq}, 16, v{t}")
    a.e(f"v_sqrt_f32 v{vq}, v{vq}")
    a.e("s_nop 0")
    a.e(f"v_cvt_pk_bf16_f32 v{t}, v{vq}, v{vq}")
    a.e(f"v_lshlrev_b32 v{vq}, 16, v{t}")
    a.e(f"v_rcp_f32 v{vq}, v{vq}")
    a.e("s_nop 0")

def wave_allreduce_add(a, regs, t):
    for qp in ("quad_perm:[1,0,3,2]", "quad_perm:[2,3,0,1]", "row_ror:4", "row_ror:8"):
        a.e("s_nop 1")
        for r in regs:
            a.e(f"v_add_f32_dpp v{r}, v{r}, v{r} {qp} row_mask:0xf bank_mask:0xf")
    for sw in ("v_permlane16_swap_b32", "v_permlane32_swap_b32"):
        for i, r in enumerate(regs): a.e(f"v_mov_b32 v{t+i}, v{r}")
        a.e("s_nop 1")
        for i, r in enumerate(regs): a.e(f"{sw} v{t+i}, v{r}")
        for i, r in enumerate(regs): a.e(f"v_add_f32 v{r}, v{r}, v{t+i}")

def gen_ln(a, name, src, dst, n, lds_, ldd):
    RPW = 2
    NWG = S // (4 * RPW)
    END = a.uniq("end")
    a.l.append(f".globl {name}\n.p2align 8\n.type {name},@function")
    a.lab(name)
    a.e(f"s_cmp_ge_u32 s2, {NWG}")
    a.e(f"s_cbranch_scc1 {END}")
    a.e(f"s_load_dwordx2 s[4:5], s[0:1], {KA[src[0]]}")
    a.e(f"s_load_dwordx2 s[8:9], s[0:1], {KA[dst[0]]}")
    a.e("v_and_b32 v1, 63, v0")
    a.e("v_lshrrev_b32 v2, 6, v0")
    a.e("s_nop 0")
    a.e("v_readfirstlane_b32 s28, v2")
    a.e("s_waitcnt lgkmcnt(0)")
    srd(a, 4, *src); srd(a, 8, *dst)
    a.e("s_lshl_b32 s24, s2, 2")
    a.e("s_add_u32 s24, s24, s28")
    a.e(f"s_mul_i32 s24, s24, {RPW}")
    a.e(f"s_mul_i32 s25, s24, {lds_}")
    a.e(f"s_mul_i32 s26, s24, {ldd}")
    a.e("v_lshlrev_b32 v3, 4, v1")
    a.e("v_mov_b32 v4, 0x3f803f80")
    nch = n // 8
    NL = (nch + 63) // 64
    rem = nch - 64 * (NL - 1)
    if rem < 64:
        a.e(f"v_cmp_gt_u32 s[30:31], {rem}, v1")
    R = 16
    for r in range(RPW):
        for j in range(NL):
            reg = R + 4 * (r * NL + j)
            if j == NL - 1 and rem < 64:
                for d in range(4): a.e(f"v_mov_b32 v{reg+d}, 0")
                a.e("s_mov_b64 exec, s[30:31]")
            a.e(f"buffer_load_dwordx4 v[{reg}:{reg+3}], v3, s[4:7], s25 offen offset:{1024*j}")
            if j == NL - 1 and rem < 64:
                a.e("s_mov_b64 exec, -1")
        a.e(f"s_add_u32 s25, s25, {lds_}")
    for r in range(RPW):
        a.e(f"v_mov_b32 v{6+2*r}, 0"); a.e(f"v_mov_b32 v{7+2*r}, 0")
    for r in range(RPW):
        a.e(f"s_waitcnt vmcnt({(RPW-1-r)*NL})")
        for j in range(NL):
            for d in range(4):
                reg = R + 4 * (r * NL + j) + d
                a.e(f"v_dot2_f32_bf16 v{6+2*r}, v{reg}, v4, v{6+2*r}")
                a.e(f"v_dot2_f32_bf16 v{7+2*r}, v{reg}, v{reg}, v{7+2*r}")
    a.e("s_nop 3")
    wave_allreduce_add(a, list(range(6, 6 + 2*RPW)), 10)
    for r in range(RPW):
        stats_finish(a, 6+2*r, 7+2*r, n, 10)
        ln_xform(a, range(R + 4*r*NL, R + 4*(r+1)*NL), 6+2*r, 7+2*r, 10, 11)
        for j in range(NL):
            reg = R + 4 * (r * NL + j)
            if j == NL - 1 and rem < 64: a.e("s_mov_b64 exec, s[30:31]")
            a.e(f"buffer_store_dwordx4 v[{reg}:{reg+3}], v3, s[8:11], s26 offen offset:{1024*j}")
            if j == NL - 1 and rem < 64: a.e("s_mov_b64 exec, -1")
        a.e(f"s_add_u32 s26, s26, {ldd}")
    a.lab(END)
    a.e("s_endpgm")
    return NWG, 0, 40

import os
STAMP = os.environ.get("STAMP", "")
def stamp(a, name, idx):
    if STAMP and STAMP in name and idx < 16:
        a.e(f"s_memtime s[{60+2*idx}:{61+2*idx}]")
def stamp_store(a, name, n):
    if STAMP and STAMP in name:
        L = a.uniq("nost")
        a.e("s_waitcnt lgkmcnt(0) vmcnt(0)")
        a.e(f"s_memtime s[{60+2*n}:{61+2*n}]")
        a.e(f"s_load_dwordx2 s[56:57], s[0:1], 72")
        a.e("s_waitcnt lgkmcnt(0)")
        a.e("s_mov_b32 s58, 256"); a.e("s_mov_b32 s59, 0x00020000")
        a.e("s_cmp_lg_u32 s2, 5"); a.e(f"s_cbranch_scc1 {L}")
        a.e("s_cmp_lg_u32 s28, 0"); a.e(f"s_cbranch_scc1 {L}")
        a.e("v_mov_b32 v1, 0")
        for i in range(n + 1):
            a.e(f"s_sub_u32 s92, s{60+2*i}, s60")
            a.e("v_mov_b32 v2, s92")
            a.e(f"buffer_store_dword v2, v1, s[56:59], 0 offen offset:{4*i}")
        a.lab(L)
def gen_gemm(a, name, M, N, K, MT, NT, NS, NW, act, wt, lda, ldb, epi, amode='plain'):
    MC = M // MT; NC = N // NT; NWG = MC * NC
    WN = NW // 2; NPW = NT // WN
    MTW = MT // 64; NTW = NPW // 32
    ASZ = MT * 128; WROW = NT * 2; WSZ = 64 * WROW; STG = ASZ + WSZ
    lds = NS * STG
    NK = K // 64
    PA = MT // 8 // NW; PB = NT // 8 // NW
    if amode == 'ln': PA = 0
    PPW = PA + PB
    AR = 128
    brows = 1024 // WROW
    END = a.uniq("end")
    a.l.append(f".globl {name}\n.p2align 8\n.type {name},@function")
    a.lab(name)
    a.e(f"s_cmp_ge_u32 s2, {NWG}")
    a.e(f"s_cbranch_scc1 {END}")
    stamp(a, name, 0)
    a.e(f"s_load_dwordx2 s[4:5], s[0:1], {KA[act[0]]}")
    a.e(f"s_load_dwordx2 s[8:9], s[0:1], {KA[wt[0]]}")
    a.e(f"s_load_dwordx2 s[12:13], s[0:1], {KA[epi['out'][0]]}")
    if 'aux' in epi: a.e(f"s_load_dwordx2 s[16:17], s[0:1], {KA[epi['aux'][0]]}")
    if 'aux3' in epi: a.e(f"s_load_dwordx2 s[48:49], s[0:1], {KA[epi['aux3'][0]]}")
    a.e(f"s_and_b32 s24, s2, {MC-1}")
    a.e(f"s_lshr_b32 s25, s2, {MC.bit_length()-1}")
    a.e(f"s_mul_i32 s26, s24, {MT}")
    a.e(f"s_mul_i32 s27, s25, {NT}")
    a.e("v_and_b32 v1, 63, v0")
    a.e("v_lshrrev_b32 v2, 6, v0")
    a.e("s_nop 0")
    a.e("v_readfirstlane_b32 s28, v2")
    a.e("s_waitcnt lgkmcnt(0)")
    srd(a, 4, *act); srd(a, 8, *wt); srd(a, 12, *epi['out'])
    if 'aux' in epi: srd(a, 16, *epi['aux'])
    if 'aux3' in epi: srd(a, 48, *epi['aux3'])
    a.e("s_and_b32 s29, s28, 1")
    a.e("s_lshr_b32 s30, s28, 1")
    a.e("v_lshrrev_b32 v5, 3, v1")
    a.e("v_lshrrev_b32 v6, 4, v1")
    a.e("s_lshl_b32 s31, s29, 2")
    a.e("v_add_u32 v7, s31, v6")
    a.e("v_and_b32 v7, 7, v7")
    a.e("v_and_b32 v8, 7, v1")
    a.e("v_xor_b32 v7, v7, v8")
    a.e(f"v_mul_u32_u24 v3, {lda}, v5")
    a.e("v_lshl_add_u32 v3, v7, 4, v3")
    if NT == 128:
        a.e("v_and_b32 v8, 15, v1")
        a.e("v_lshlrev_b32 v7, 2, v6")
        a.e("v_xor_b32 v7, v7, v8")
        a.e(f"v_mul_u32_u24 v4, {ldb}, v6")
    else:
        a.e("v_bfe_u32 v7, v1, 4, 1")
        a.e("v_lshlrev_b32 v7, 2, v7")
        a.e("v_xor_b32 v7, v7, v8")
        a.e(f"v_mul_u32_u24 v4, {ldb}, v5")
    a.e("v_lshl_add_u32 v4, v7, 4, v4")
    a.e("s_lshl_b32 s31, s28, 3")
    a.e("s_add_u32 s31, s31, s26")
    a.e(f"s_mul_i32 s32, s31, {lda}")
    for i in range(1, PA): a.e(f"s_add_u32 s{32+i}, s32, {8*NW*i*lda}")
    a.e(f"s_mul_i32 s36, s28, {brows*ldb}")
    a.e("s_lshl_b32 s31, s27, 1")
    a.e("s_add_u32 s36, s36, s31")
    for i in range(1, PB): a.e(f"s_add_u32 s{36+i}, s36, {NW*brows*i*ldb}")
    a.e("s_lshl_b32 s45, s28, 10")
    a.e("v_and_b32 v9, 31, v1")
    a.e(f"s_mul_i32 s31, s29, {MT//2}")
    a.e("v_add_u32 v9, s31, v9")
    a.e("v_lshrrev_b32 v14, 5, v1")
    a.e("v_bfe_u32 v15, v1, 1, 3")
    a.e("v_xor_b32 v15, v15, v14")
    a.e("v_lshlrev_b32 v16, 7, v9")
    for ks in range(4):
        a.e(f"v_xor_b32 v17, {2*ks}, v15")
        a.e(f"v_lshl_add_u32 v{10+ks}, v17, 4, v16")
    a.e("v_bfe_u32 v15, v1, 2, 2")
    a.e("v_lshl_add_u32 v16, v14, 3, v15")
    a.e(f"v_mul_u32_u24 v16, {WROW}, v16")
    a.e("v_bfe_u32 v17, v1, 4, 1")
    a.e("v_lshlrev_b32 v17, 1, v17")
    a.e("v_bfe_u32 v18, v1, 1, 1")
    a.e("v_add_u32 v17, v17, v18")
    a.e(f"s_mul_i32 s31, s30, {NPW//8}")
    a.e("v_add_u32 v17, s31, v17")
    if NT == 128: a.e("v_lshlrev_b32 v15, 2, v15")
    else:
        a.e("v_bfe_u32 v15, v1, 3, 1"); a.e("v_lshlrev_b32 v15, 2, v15")
    a.e("v_and_b32 v18, 1, v1")
    a.e("v_lshl_add_u32 v16, v18, 3, v16")
    a.e(f"v_add_u32 v16, {ASZ}, v16")
    for nt in range(NTW):
        a.e(f"v_add_u32 v18, {4*nt}, v17")
        a.e("v_xor_b32 v18, v18, v15")
        a.e(f"v_lshl_add_u32 v{20+nt}, v18, 4, v16")
    ACC = 64
    FA = [32, 48]; FW = [40, 56]
    T0, T1 = 28, 29
    for r in range(ACC, ACC + 16*MTW*NTW): a.e(f"v_mov_b32 v{r}, 0")
    def dma_groups(tile):
        slot = tile % NS
        g = []
        for i in range(PA):
            g.append([f"s_add_u32 m0, s45, {slot*STG + 1024*NW*i}",
                      f"s_add_u32 s46, s{32+i}, {tile*128}",
                      f"buffer_load_dwordx4 v3, s[4:7], s46 offen lds"])
        if amode == 'ln':
            for i in range(2):
                r = AR + 4*(8*i + tile)
                g.append([f"v_add_u32 v31, {slot*STG + 8192*i}, v30", f"ds_write_b128 v31, v[{r}:{r+3}]"])
        for i in range(PB):
            g.append([f"s_add_u32 m0, s45, {slot*STG + ASZ + 1024*NW*i}",
                      f"s_add_u32 s46, s{36+i}, {tile*64*ldb}",
                      f"buffer_load_dwordx4 v4, s[8:11], s46 offen lds"])
        return g
    def dma(tile):
        for g in dma_groups(tile):
            for x in g: a.e(x)
    def frag_reads(ks, st):
        for mt in range(MTW):
            a.e(f"ds_read_b128 v[{FA[st]+4*mt}:{FA[st]+4*mt+3}], v{22+ks} offset:{mt*4096}")
        for nt in range(NTW):
            a.e(f"ds_read_b64_tr_b16 v[{FW[st]+4*nt}:{FW[st]+4*nt+1}], v{26+nt} offset:{ks*16*WROW}")
            a.e(f"ds_read_b64_tr_b16 v[{FW[st]+4*nt+2}:{FW[st]+4*nt+3}], v{26+nt} offset:{ks*16*WROW + 4*WROW}")
    NRD = MTW + 2*NTW
    def compute(tile, swap, extra):
        slot = tile % NS
        for ks in range(4): a.e(f"v_add_u32 v{22+ks}, {slot*STG}, v{10+ks}")
        for nt in range(NTW): a.e(f"v_add_u32 v{26+nt}, {slot*STG}, v{20+nt}")
        frag_reads(0, 0)
        for ks in range(4):
            st = ks & 1
            if ks < 3:
                frag_reads(ks+1, st ^ 1)
                a.e(f"s_waitcnt lgkmcnt({NRD})")
            else:
                a.e("s_waitcnt lgkmcnt(0)")
            for nt in range(NTW):
                for mt in range(MTW):
                    acc = ACC + 16*(nt*MTW + mt)
                    fa = f"v[{FA[st]+4*mt}:{FA[st]+4*mt+3}]"; fw = f"v[{FW[st]+4*nt}:{FW[st]+4*nt+3}]"
                    if swap: a.e(f"v_mfma_f32_32x32x16_bf16 v[{acc}:{acc+15}], {fa}, {fw}, v[{acc}:{acc+15}]")
                    else:    a.e(f"v_mfma_f32_32x32x16_bf16 v[{acc}:{acc+15}], {fw}, {fa}, v[{acc}:{acc+15}]")
                    if extra:
                        for x in extra.pop(0): a.e(x)
        while extra:
            for x in extra.pop(0): a.e(x)
    def mainloop(swap):
        stamp(a, name, 1)
        if amode == 'ln':
            assert NW == 8 and MT == 128 and NK == 8
            for t in range(NS-1):
                for g in dma_groups(t)[2:]:
                    for x in g: a.e(x)
            a.e("v_lshrrev_b32 v30, 3, v0")
            a.e("v_and_b32 v31, 7, v0")
            a.e(f"v_mul_u32_u24 v5, {lda}, v30")
            a.e("v_lshl_add_u32 v5, v31, 4, v5")
            a.e(f"s_mul_i32 s46, s26, {lda}")
            a.e(f"s_add_u32 s47, s46, {64*lda}")
            for i in range(2):
                for kt in range(8):
                    r = AR + 4*(8*i + kt)
                    a.e(f"buffer_load_dwordx4 v[{r}:{r+3}], v5, s[4:7], s{46+i} offen offset:{128*kt}")
            a.e("v_bfe_u32 v5, v0, 4, 3")
            a.e("v_xor_b32 v31, v31, v5")
            a.e("v_lshlrev_b32 v30, 7, v30")
            a.e("v_lshl_add_u32 v30, v31, 4, v30")
            a.e("v_mov_b32 v5, 0x3f803f80")
            for i in range(4): a.e(f"v_mov_b32 v{32+i}, 0")
            for i in range(2):
                for kt in range(8):
                    a.e(f"s_waitcnt vmcnt({15 - 8*i - kt})")
                    for d in range(4):
                        r = AR + 4*(8*i + kt) + d
                        a.e(f"v_dot2_f32_bf16 v{32+2*i}, v{r}, v5, v{32+2*i}")
                        a.e(f"v_dot2_f32_bf16 v{33+2*i}, v{r}, v{r}, v{33+2*i}")
            a.e("s_nop 3")
            for qp in ("quad_perm:[1,0,3,2]", "quad_perm:[2,3,0,1]", "row_half_mirror"):
                for i in range(4):
                    a.e(f"v_add_f32_dpp v{32+i}, v{32+i}, v{32+i} {qp} row_mask:0xf bank_mask:0xf")
                a.e("s_nop 1")
            for i in range(2):
                stats_finish(a, 32+2*i, 33+2*i, 512, 36)
                ln_xform(a, range(AR + 32*i, AR + 32*i + 32), 32+2*i, 33+2*i, 36, 37)
            for t in range(NS-1):
                for g in dma_groups(t)[:2]:
                    for x in g: a.e(x)
        else:
            for t in range(min(NS-1, NK)): dma(t)
        stamp(a, name, 2)
        for t in range(NK):
            ahead = min(NK - 1, t + NS - 2) - t
            a.e(f"s_waitcnt vmcnt({ahead*PPW}) lgkmcnt(0)")
            a.e("s_barrier")
            if t < 9: stamp(a, name, 3 + t)
            compute(t, swap, dma_groups(t + NS - 1) if t + NS - 1 < NK else [])
        stamp(a, name, 12)
        a.e("s_nop 15")
    kind = epi['kind']
    SA = 32
    if kind == 'qkv':
        LV = a.uniq("vpath")
        a.e("s_cmp_ge_u32 s25, 8")
        a.e(f"s_cbranch_scc1 {LV}")
        mainloop(False)
        a.e("v_lshlrev_b32 v17, 5, v9")
        a.e("v_lshl_add_u32 v17, v14, 3, v17")
        a.e(f"s_mul_i32 s31, s30, {NPW//16*65536}")
        a.e("v_add_u32 v17, s31, v17")
        a.e("s_lshr_b32 s41, s25, 2")
        a.e("s_lshl_b32 s41, s41, 21")
        a.e("s_and_b32 s42, s25, 3")
        a.e("s_lshl_b32 s42, s42, 19")
        a.e("s_add_u32 s41, s41, s42")
        a.e("s_lshl_b32 s42, s26, 5")
        a.e("s_add_u32 s41, s41, s42")
        for nt in range(NTW):
            for mt in range(MTW):
                acc = ACC + 16*(nt*MTW + mt)
                for rq in range(4):
                    r = acc + 4*rq
                    a.e(f"v_cvt_pk_bf16_f32 v{T0}, v{r}, v{r+1}")
                    a.e(f"v_cvt_pk_bf16_f32 v{T1}, v{r+2}, v{r+3}")
                    a.e(f"s_add_u32 s42, s41, {mt*1024 + (2*nt + (rq>>1))*65536}")
                    a.e(f"buffer_store_dwordx2 v[{T0}:{T1}], v17, s[12:15], s42 offen offset:{(rq&1)*16}")
                    a.e("s_nop 1")
        a.e(f"s_branch {END}")
        a.lab(LV)
        mainloop(True)
        a.e("v_and_b32 v17, 31, v1")
        a.e(f"s_mul_i32 s31, s30, {NPW}")
        a.e("v_add_u32 v17, s31, v17")
        a.e("v_lshlrev_b32 v17, 12, v17")
        a.e("v_lshl_add_u32 v17, v14, 3, v17")
        a.e("s_lshl_b32 s31, s29, 7")
        a.e("v_add_u32 v17, s31, v17")
        a.e("s_sub_u32 s41, s27, 1024")
        a.e("s_lshl_b32 s41, s41, 12")
        a.e(f"s_add_u32 s41, s41, {WS_VT}")
        a.e("s_lshl_b32 s42, s26, 1")
        a.e("s_add_u32 s41, s41, s42")
        for nt in range(NTW):
            for mt in range(MTW):
                acc = ACC + 16*(nt*MTW + mt)
                for rq in range(4):
                    r = acc + 4*rq
                    a.e(f"v_cvt_pk_bf16_f32 v{T0}, v{r}, v{r+1}")
                    a.e(f"v_cvt_pk_bf16_f32 v{T1}, v{r+2}, v{r+3}")
                    a.e(f"s_add_u32 s42, s41, {nt*32*4096 + mt*64}")
                    a.e(f"buffer_store_dwordx2 v[{T0}:{T1}], v17, s[12:15], s42 offen offset:{rq*16}")
                    a.e("s_nop 1")
    else:
        mainloop(False)
        ldo = epi['ldo']
        a.e(f"v_mul_u32_u24 v17, {ldo}, v9")
        a.e("v_lshl_add_u32 v17, v14, 3, v17")
        a.e(f"s_mul_i32 s31, s30, {NPW*2}")
        a.e("v_add_u32 v17, s31, v17")
        a.e(f"s_mul_i32 s41, s26, {ldo}")
        a.e("s_lshl_b32 s42, s27, 1")
        a.e("s_add_u32 s41, s41, s42")
        if kind in ('res', 'gate'):
            lda2 = epi['ldaux']
            a.e(f"v_mul_u32_u24 v18, {lda2}, v9")
            a.e("v_lshl_add_u32 v18, v14, 3, v18")
            a.e("v_add_u32 v18, s31, v18")
            a.e(f"s_mul_i32 s43, s26, {lda2}")
            a.e("s_add_u32 s43, s43, s42")
        if kind == 'gate':
            a.e("v_add_u32 v19, s26, v9")
            a.e("v_lshlrev_b32 v19, 1, v19")
            for mt in range(MTW):
                a.e(f"buffer_load_ushort v{20+mt}, v19, s[48:51], 0 offen offset:{mt*64}")
        E = 48
        for mt in range(MTW):
            a.e(f"s_add_u32 s42, s41, {mt*32*ldo}")
            if kind in ('res', 'gate'):
                a.e(f"s_add_u32 s44, s43, {mt*32*lda2}")
                for nt in range(NTW):
                    for rq in range(4):
                        a.e(f"buffer_load_dwordx2 v[{SA+2*(4*nt+rq)}:{SA+2*(4*nt+rq)+1}], v18, s[16:19], s44 offen offset:{nt*64+rq*16}")
                a.e("s_waitcnt vmcnt(0)")
                if kind == 'gate':
                    a.e(f"v_lshlrev_b32 v{20+mt}, 16, v{20+mt}")
            for nt in range(NTW):
                acc = ACC + 16*(nt*MTW + mt)
                for rq in range(4):
                    r = acc + 4*rq
                    a.e(f"v_cvt_pk_bf16_f32 v{T0}, v{r}, v{r+1}")
                    a.e(f"v_cvt_pk_bf16_f32 v{T1}, v{r+2}, v{r+3}")
                    unpack2(a, E, E+1, T0); unpack2(a, E+2, E+3, T1)
                    if kind == 'res':
                        x0 = SA + 2*(4*nt+rq)
                        unpack2(a, E+4, E+5, x0); unpack2(a, E+6, E+7, x0+1)
                        for j in range(4): a.e(f"v_add_f32 v{E+j}, v{E+j}, v{E+4+j}")
                    elif kind == 'gate':
                        x0 = SA + 2*(4*nt+rq)
                        for j in range(4): a.e(f"v_add_f32 v{E+j}, v{E+j}, v{20+mt}")
                        a.e(f"v_cvt_pk_bf16_f32 v{T0}, v{E}, v{E+1}")
                        a.e(f"v_cvt_pk_bf16_f32 v{T1}, v{E+2}, v{E+3}")
                        unpack2(a, E, E+1, T0); unpack2(a, E+2, E+3, T1)
                        unpack2(a, E+4, E+5, x0); unpack2(a, E+6, E+7, x0+1)
                        for j in range(4): a.e(f"v_mul_f32 v{E+j}, v{E+j}, v{E+4+j}")
                    elif kind == 'gelu':
                        c1 = -2.0 * 1.4426950408889634 * 0.7978845608028654
                        for j in range(4):
                            a.e(f"v_mul_f32 v{E+4+j}, v{E+j}, v{E+j}")
                            a.e(f"v_mul_f32 v{E+4+j}, 0x{f32hex(0.044715*c1)}, v{E+4+j}")
                            a.e(f"v_add_f32 v{E+4+j}, 0x{f32hex(c1)}, v{E+4+j}")
                            a.e(f"v_mul_f32 v{E+4+j}, v{E+4+j}, v{E+j}")
                            a.e(f"v_exp_f32 v{E+4+j}, v{E+4+j}")
                        a.e("s_nop 0")
                        for j in range(4): a.e(f"v_add_f32 v{E+4+j}, 1.0, v{E+4+j}")
                        for j in range(4): a.e(f"v_rcp_f32 v{E+4+j}, v{E+4+j}")
                        a.e("s_nop 0")
                        for j in range(4): a.e(f"v_mul_f32 v{E+j}, v{E+j}, v{E+4+j}")
                    a.e(f"v_cvt_pk_bf16_f32 v{T0}, v{E}, v{E+1}")
                    a.e(f"v_cvt_pk_bf16_f32 v{T1}, v{E+2}, v{E+3}")
                    a.e(f"buffer_store_dwordx2 v[{T0}:{T1}], v17, s[12:15], s42 offen offset:{nt*64+rq*16}")
                    a.e("s_nop 1")
    stamp_store(a, name, 13)
    a.lab(END)
    a.e("s_endpgm")
    return NWG, lds, (192 if amode == 'ln' else 128), NW*64

def main():
    a = Asm()
    launches = []; kds = []
    def add(name, nwg, lds, nv, blk=256):
        launches.append(f"; @launch kernel={name} grid=({nwg},1,1) block=({blk},1,1) lds={lds}")
        kds.append(kd(name, nv))
    FUSE = os.environ.get("FUSE", "1") == "1"
    if not FUSE:
        add("k0_ln1_kernel", *gen_ln(a, "k0_ln1_kernel", ('x', 0, 2*MB), ('ws', WS_L1, 2*MB), 512, 1024, 1024))
    add("k1_qkv_kernel", *gen_gemm(a, "k1_qkv_kernel", S, 1536, 512, 128, 128, 4, 8, ('x', 0, 2*MB) if FUSE else ('ws', WS_L1, 2*MB), ('wqkv', 0, 512*1536*2), 1024, 3072,
                 dict(kind='qkv', out=('ws', WS_Q, 6*MB)), amode='ln' if FUSE else 'plain'))
    import attn2 as attn
    add("k2_attn_kernel", *attn.gen_attn(a, "k2_attn_kernel"))
    add("k3_wo_kernel", *gen_gemm(a, "k3_wo_kernel", S, 512, 512, 64, 64, 8, 4, ('ws', WS_O, 2*MB), ('wo', 0, 512*512*2), 1024, 1024,
                 dict(kind='res', out=('ws', WS_H, 2*MB), ldo=1024, aux=('x', 0, 2*MB), ldaux=1024)))
    if not FUSE:
        add("k3b_ln2_kernel", *gen_ln(a, "k3b_ln2_kernel", ('ws', WS_H, 2*MB), ('ws', WS_L2, 2*MB), 512, 1024, 1024))
    add("k4_win_kernel", *gen_gemm(a, "k4_win_kernel", S, 1792, 512, 128, 128, 4, 8, ('ws', WS_H, 2*MB) if FUSE else ('ws', WS_L2, 2*MB), ('w_in', 0, 512*1792*2), 1024, 3584,
                 dict(kind='gelu', out=('ws', WS_Z, S*1792*2), ldo=3584), amode='ln' if FUSE else 'plain'))
    add("k4b_lnz_kernel", *gen_ln(a, "k4b_lnz_kernel", ('ws', WS_Z + 896*2, S*1792*2 - 896*2), ('ws', WS_ZN, S*896*2), 896, 3584, 1792))
    add("k5_sp_kernel", *gen_gemm(a, "k5_sp_kernel", S, 896, 2048, 64, 128, 6, 8, ('w_sp', 0, S*S*2), ('ws', WS_ZN, S*896*2), 4096, 1792,
                 dict(kind='gate', out=('ws', WS_Y, S*896*2), ldo=1792, aux=('ws', WS_Z, S*1792*2), ldaux=3584, aux3=('b_sp', 0, S*2))))
    add("k6_out_kernel", *gen_gemm(a, "k6_out_kernel", S, 512, 896, 64, 64, 8, 4, ('ws', WS_Y, S*896*2), ('w_out', 0, 896*512*2), 1792, 1024,
                 dict(kind='res', out=('out', 0, 2*MB), ldo=1024, aux=('ws', WS_H, 2*MB), ldaux=1024)))
    hdr = open(f"cdna_kernels/{NAME}.s.ref").read().split("; @launch")[0]
    out = hdr + "\n".join(launches) + "\n" + '.amdgcn_target "amdgcn-amd-amdhsa--gfx950"\n.text\n' + a.text() + "".join(kds)
    open(sys.argv[1] if len(sys.argv) > 1 else f"cdna_kernels/{NAME}.s", "w").write(out)

if __name__ == "__main__":
    sys.path.insert(0, "dev")
    main()
```

```python
from gen2 import *
import os
def gen_attn(a, name):
    NWG = 32 * 32
    KB = 0; VB = 320 * 32; VROW = 41 * 16
    lds = VB + 11 * 1024
    END = a.uniq("end")
    a.l.append(f".globl {name}\n.p2align 8\n.type {name},@function")
    a.lab(name)
    a.e(f"s_cmp_ge_u32 s2, {NWG}")
    a.e(f"s_cbranch_scc1 {END}")
    a.e(f"s_load_dwordx2 s[4:5], s[0:1], {KA['ws']}")
    a.e("s_and_b32 s24, s2, 31")
    a.e("s_lshr_b32 s25, s2, 5")
    a.e("v_and_b32 v1, 63, v0")
    a.e("v_lshrrev_b32 v2, 6, v0")
    a.e("s_nop 0")
    a.e("v_readfirstlane_b32 s28, v2")
    a.e("s_waitcnt lgkmcnt(0)")
    a.e("s_mov_b32 s8, s4"); a.e("s_mov_b32 s9, s5")
    a.e("s_mov_b32 s12, s4"); a.e("s_mov_b32 s13, s5")
    a.e("s_mov_b32 s16, s4"); a.e("s_mov_b32 s17, s5")
    a.e("s_lshl_b32 s26, s25, 16")
    a.e(f"s_add_u32 s4, s4, s26"); a.e("s_addc_u32 s5, s5, 0")
    a.e("s_mov_b32 s6, 0x10000"); a.e("s_mov_b32 s7, 0x00020000")
    a.e(f"s_add_u32 s27, s26, {WS_K}")
    a.e(f"s_add_u32 s8, s8, s27"); a.e("s_addc_u32 s9, s9, 0")
    a.e("s_mov_b32 s10, 0x10000"); a.e("s_mov_b32 s11, 0x00020000")
    a.e(f"s_add_u32 s27, s26, {WS_VT}")
    a.e(f"s_add_u32 s12, s12, s27"); a.e("s_addc_u32 s13, s13, 0")
    a.e("s_mov_b32 s14, 0x10000"); a.e("s_mov_b32 s15, 0x00020000")
    srd(a, 16, 'ws', WS_O, 2*MB)
    a.e("s_lshl_b32 s29, s24, 6")
    a.e("s_sub_i32 s31, s29, 256")
    a.e("v_lshlrev_b32 v3, 4, v1")
    a.e("s_lshl_b32 s32, s31, 5")
    a.e("s_lshl_b32 s33, s28, 10")
    a.e("s_add_u32 s32, s32, s33")
    a.e("v_add_u32 v4, s32, v3")
    for i in range(3):
        L = a.uniq("sk")
        if i == 2:
            a.e("s_cmp_ge_u32 s28, 2"); a.e(f"s_cbranch_scc1 {L}")
        a.e(f"s_add_u32 m0, s33, {KB + 4096*i}")
        a.e("s_nop 0")
        a.e(f"buffer_load_dwordx4 v4, s[8:11], 0 offen lds")
        a.e("v_add_u32 v4, 0x1000, v4")
        if i == 2: a.lab(L)
    a.e("s_lshl_b32 s34, s31, 1")
    a.e(f"s_mov_b32 s35, {(1 << 32) // 41 + 1}")
    for i in range(3):
        L = a.uniq("sv")
        if i == 2:
            a.e("s_cmp_ge_u32 s28, 3"); a.e(f"s_cbranch_scc1 {L}")
        a.e(f"s_lshl_b32 s36, s28, 6")
        a.e(f"v_add_u32 v5, {256*i}, v1")
        a.e("v_add_u32 v5, s36, v5")
        a.e("v_mul_hi_u32 v6, v5, s35")
        a.e("v_mul_u32_u24 v7, 41, v6")
        a.e("v_sub_u32 v7, v5, v7")
        a.e("v_lshlrev_b32 v8, 12, v6")
        a.e("v_lshl_add_u32 v8, v7, 4, v8")
        a.e("v_add_u32 v8, s34, v8")
        a.e("v_cmp_lt_u32 vcc, 15, v6")
        a.e("s_nop 1")
        a.e("v_cndmask_b32 v8, v8, -1, vcc")
        a.e(f"s_add_u32 m0, s33, {VB + 4096*i}")
        a.e("s_nop 0")
        a.e(f"buffer_load_dwordx4 v8, s[12:15], 0 offen lds")
        if i == 2: a.lab(L)
    if os.environ.get("PF", "1") == "1":
        a.e(f"s_load_dwordx2 s[44:45], s[0:1], {KA['w_sp']}")
        a.e(f"s_load_dwordx2 s[48:49], s[0:1], {KA['w_in']}")
        a.e(f"s_load_dwordx2 s[52:53], s[0:1], {KA['wo']}")
        a.e(f"s_load_dwordx2 s[56:57], s[0:1], {KA['w_out']}")
        a.e("s_lshl_b32 s41, s2, 8")
        a.e("v_add_u32 v124, s41, v0")
        a.e("v_lshlrev_b32 v124, 4, v124")
        a.e("s_waitcnt lgkmcnt(0)")
        a.e(f"s_mov_b32 s46, {S*S*2}"); a.e("s_mov_b32 s47, 0x00020000")
        a.e(f"s_mov_b32 s50, {512*1792*2}"); a.e("s_mov_b32 s51, 0x00020000")
        a.e(f"s_mov_b32 s54, {512*512*2}"); a.e("s_mov_b32 s55, 0x00020000")
        a.e(f"s_mov_b32 s58, {896*512*2}"); a.e("s_mov_b32 s59, 0x00020000")
        a.e("s_mov_b32 s41, 0x400000")
        a.e("buffer_load_dwordx4 v[124:127], v124, s[44:47], 0 offen")
        a.e("buffer_load_dwordx4 v[124:127], v124, s[44:47], s41 offen")
        a.e("buffer_load_dwordx4 v[124:127], v124, s[48:51], 0 offen")
        a.e("buffer_load_dwordx4 v[124:127], v124, s[52:55], 0 offen")
        a.e("buffer_load_dwordx4 v[124:127], v124, s[56:59], 0 offen")
    a.e("s_lshl_b32 s30, s28, 4")
    a.e("s_add_u32 s29, s29, s30")
    a.e("s_sub_i32 s31, s29, 256")
    a.e("v_and_b32 v2, 15, v1")
    a.e("v_lshrrev_b32 v3, 4, v1")
    a.e("v_lshlrev_b32 v4, 5, v2")
    a.e("v_lshl_add_u32 v4, v3, 3, v4")
    a.e("s_lshl_b32 s30, s29, 5")
    a.e("buffer_load_dwordx2 v[6:7], v4, s[4:7], s30 offen")
    a.e("s_lshl_b32 s36, s28, 9")
    a.e("v_add_u32 v4, s36, v4")
    a.e(f"v_mul_u32_u24 v5, {VROW}, v2")
    a.e("v_lshl_add_u32 v5, v3, 3, v5")
    a.e("s_lshl_b32 s36, s28, 5")
    a.e(f"s_add_u32 s36, s36, {VB}")
    a.e("v_add_u32 v5, s36, v5")
    KF = 20; SC = 56
    for r in range(SC, SC+68): a.e(f"v_mov_b32 v{r}, 0")
    for r in range(8, 12): a.e(f"v_mov_b32 v{r}, 0")
    a.e("v_mov_b32 v12, 0xff800000")
    a.e("v_lshlrev_b32 v13, 2, v3")
    a.e("v_sub_u32 v13, v13, v2")
    a.e("s_waitcnt vmcnt(0)")
    a.e("s_barrier")
    for j in range(17):
        a.e(f"ds_read_b64 v[{KF+2*j}:{KF+2*j+1}], v4 offset:{512*j}")
    for j in range(17):
        a.e(f"s_waitcnt lgkmcnt({min(15, 16-j)})")
        a.e(f"v_mfma_f32_16x16x16_bf16 v[{SC+4*j}:{SC+4*j+3}], v[{KF+2*j}:{KF+2*j+1}], v[6:7], v[{SC+4*j}:{SC+4*j+3}]")
    a.e("s_nop 7")
    for r in range(4):
        a.e(f"v_cmp_gt_i32 vcc, {-r}, v13")
        a.e(f"v_cmp_le_i32 s[34:35], {-r}, v13")
        a.e(f"v_cmp_eq_i32 s[36:37], {-r}, v13")
        a.e("s_nop 1")
        a.e("s_or_b64 s[38:39], vcc, s[36:37]")
        a.e(f"v_cndmask_b32 v{SC+r}, v{SC+r}, v12, s[38:39]")
        a.e("s_andn2_b64 s[38:39], s[34:35], s[36:37]")
        a.e(f"v_cndmask_b32 v{SC+64+r}, v{SC+64+r}, v12, s[38:39]")
    for j in range(16):
        L = a.uniq("ok")
        a.e(f"s_add_i32 s32, s31, {16*j}")
        a.e("s_cmp_ge_i32 s32, 0")
        a.e(f"s_cbranch_scc1 {L}")
        for r in range(4): a.e(f"v_mov_b32 v{SC+4*j+r}, v12")
        a.lab(L)
    a.e(f"v_max3_f32 v14, v{SC}, v{SC+1}, v{SC+2}")
    a.e(f"v_max3_f32 v15, v{SC+3}, v{SC+4}, v{SC+5}")
    rr = list(range(SC+6, SC+68))
    i = 0
    while len(rr) >= 2:
        t = 14 + (i & 1); i += 1
        a.e(f"v_max3_f32 v{t}, v{t}, v{rr[0]}, v{rr[1]}"); rr = rr[2:]
    a.e("v_max_f32 v14, v14, v15")
    a.e("v_mov_b32 v15, v14")
    a.e("s_nop 1")
    a.e("v_permlane32_swap_b32 v15, v14")
    a.e("v_max_f32 v14, v14, v15")
    a.e("v_mov_b32 v15, v14")
    a.e("s_nop 1")
    a.e("v_permlane16_swap_b32 v15, v14")
    a.e("v_max_f32 v14, v14, v15")
    c = 0.25 * 1.4426950408889634
    a.e(f"s_mov_b32 s40, 0x{f32hex(c)}")
    a.e("v_mul_f32 v14, s40, v14")
    a.e("v_mov_b32 v16, 0")
    a.e("v_mov_b32 v17, 0")
    VS = [18, 54]
    for j in range(17):
        r = SC + 4*j
        for k in range(4): a.e(f"v_fma_f32 v{r+k}, v{r+k}, s40, -v14")
        for k in range(4): a.e(f"v_exp_f32 v{r+k}, v{r+k}")
        a.e(f"ds_read_b64 v[{VS[j&1]}:{VS[j&1]+1}], v5 offset:{32*j}")
        a.e(f"v_add_f32 v16, v16, v{r}")
        a.e(f"v_add_f32 v17, v17, v{r+1}")
        a.e(f"v_add_f32 v16, v16, v{r+2}")
        a.e(f"v_add_f32 v17, v17, v{r+3}")
        a.e(f"v_cvt_pk_bf16_f32 v{KF+2*j}, v{r}, v{r+1}")
        a.e(f"v_cvt_pk_bf16_f32 v{KF+2*j+1}, v{r+2}, v{r+3}")
        a.e("s_waitcnt lgkmcnt(0)")
        a.e("s_nop 1")
        a.e(f"v_mfma_f32_16x16x16_bf16 v[8:11], v[{VS[j&1]}:{VS[j&1]+1}], v[{KF+2*j}:{KF+2*j+1}], v[8:11]")
    a.e("v_add_f32 v16, v16, v17")
    a.e("v_mov_b32 v15, v16")
    a.e("s_nop 1")
    a.e("v_permlane32_swap_b32 v15, v16")
    a.e("v_add_f32 v16, v16, v15")
    a.e("v_mov_b32 v15, v16")
    a.e("s_nop 1")
    a.e("v_permlane16_swap_b32 v15, v16")
    a.e("v_add_f32 v16, v16, v15")
    a.e("v_rcp_f32 v16, v16")
    a.e("s_nop 7")
    for r in range(4): a.e(f"v_mul_f32 v{8+r}, v{8+r}, v16")
    a.e("v_cvt_pk_bf16_f32 v8, v8, v9")
    a.e("v_cvt_pk_bf16_f32 v9, v10, v11")
    a.e("v_lshlrev_b32 v4, 10, v2")
    a.e("v_lshl_add_u32 v4, v3, 3, v4")
    a.e("s_lshl_b32 s30, s29, 10")
    a.e("s_lshl_b32 s31, s25, 5")
    a.e("s_add_u32 s30, s30, s31")
    a.e("buffer_store_dwordx2 v[8:9], v4, s[16:19], s30 offen")
    a.lab(END)
    a.e("s_endpgm")
    return NWG, lds, 128
```

```python
import sys, struct
NAME = "sequential_preLN__sliding_block__mixer_gmlp__prompt"
MB = 1 << 20
WS_Q, WS_K, WS_VT, WS_O, WS_H, WS_Z, WS_Y = 0, 2*MB, 4*MB, 6*MB, 8*MB, 10*MB, 18*MB
WS_L1, WS_L2, WS_ZN = 22*MB, 24*MB, 26*MB
KA = dict(x=0, wqkv=8, wo=16, w_in=32, w_sp=40, b_sp=48, w_out=56, out=64, dbg=72, ws=80)
S, D = 2048, 512

class Asm:
    def __init__(self):
        self.l = []; self.n = 0
    def e(self, s): self.l.append("    " + s)
    def lab(self, s): self.l.append(s + ":")
    def uniq(self, p):
        self.n += 1
        return f"L_{p}_{self.n}"
    def text(self): return "\n".join(self.l) + "\n"

def f32hex(f): return "%08x" % struct.unpack("<I", struct.pack("<f", f))[0]

def srd(a, sreg, karg, off, size):
    if off:
        a.e(f"s_add_u32 s{sreg}, s{sreg}, 0x{off:x}")
        a.e(f"s_addc_u32 s{sreg+1}, s{sreg+1}, 0")
    a.e(f"s_mov_b32 s{sreg+2}, 0x{size:x}")
    a.e(f"s_mov_b32 s{sreg+3}, 0x00020000")

def kd(name, nvgpr, nsgpr=96):
    nv = (nvgpr + 7) // 8 * 8
    return f""".section .rodata,"a"
.p2align 6
.amdhsa_kernel {name}
  .amdhsa_next_free_vgpr {nv}
  .amdhsa_next_free_sgpr {nsgpr}
  .amdhsa_accum_offset {nv}
  .amdhsa_group_segment_fixed_size 0
  .amdhsa_kernarg_size 88
  .amdhsa_user_sgpr_count 2
  .amdhsa_user_sgpr_kernarg_segment_ptr 1
  .amdhsa_system_sgpr_workgroup_id_x 1
.end_amdhsa_kernel
.text
"""

def unpack2(a, lo, hi, src):
    a.e(f"v_lshlrev_b32 v{lo}, 16, v{src}")
    a.e(f"v_and_b32 v{hi}, 0xffff0000, v{src}")

def ln_xform(a, regs, vm, vr, t0, t1):
    for r in regs:
        unpack2(a, t0, t1, r)
        a.e(f"v_sub_f32 v{t0}, v{t0}, v{vm}")
        a.e(f"v_sub_f32 v{t1}, v{t1}, v{vm}")
        a.e(f"v_cvt_pk_bf16_f32 v{r}, v{t0}, v{t1}")
        unpack2(a, t0, t1, r)
        a.e(f"v_mul_f32 v{t0}, v{t0}, v{vr}")
        a.e(f"v_mul_f32 v{t1}, v{t1}, v{vr}")
        a.e(f"v_cvt_pk_bf16_f32 v{r}, v{t0}, v{t1}")

def stats_finish(a, vs, vq, n, t):
    a.e(f"v_mul_f32 v{vs}, 0x{f32hex(1.0/n)}, v{vs}")
    a.e(f"v_mul_f32 v{vq}, 0x{f32hex(1.0/n)}, v{vq}")
    a.e(f"v_fma_f32 v{vq}, -v{vs}, v{vs}, v{vq}")
    a.e(f"v_max_f32 v{vq}, 0, v{vq}")
    a.e(f"v_cvt_pk_bf16_f32 v{t}, v{vs}, v{vq}")
    unpack2(a, vs, vq, t)
    a.e(f"v_add_f32 v{vq}, 0x{f32hex(1e-5)}, v{vq}")
    a.e(f"v_cvt_pk_bf16_f32 v{t}, v{vq}, v{vq}")
    a.e(f"v_lshlrev_b32 v{vq}, 16, v{t}")
    a.e(f"v_sqrt_f32 v{vq}, v{vq}")
    a.e("s_nop 0")
    a.e(f"v_cvt_pk_bf16_f32 v{t}, v{vq}, v{vq}")
    a.e(f"v_lshlrev_b32 v{vq}, 16, v{t}")
    a.e(f"v_rcp_f32 v{vq}, v{vq}")
    a.e("s_nop 0")

def wave_allreduce_add(a, regs, t):
    for qp in ("quad_perm:[1,0,3,2]", "quad_perm:[2,3,0,1]", "row_ror:4", "row_ror:8"):
        a.e("s_nop 1")
        for r in regs:
            a.e(f"v_add_f32_dpp v{r}, v{r}, v{r} {qp} row_mask:0xf bank_mask:0xf")
    for sw in ("v_permlane16_swap_b32", "v_permlane32_swap_b32"):
        for i, r in enumerate(regs): a.e(f"v_mov_b32 v{t+i}, v{r}")
        a.e("s_nop 1")
        for i, r in enumerate(regs): a.e(f"{sw} v{t+i}, v{r}")
        for i, r in enumerate(regs): a.e(f"v_add_f32 v{r}, v{r}, v{t+i}")

def gen_ln(a, name, src, dst, n, lds_, ldd):
    RPW = 2
    NWG = S // (4 * RPW)
    END = a.uniq("end")
    a.l.append(f".globl {name}\n.p2align 8\n.type {name},@function")
    a.lab(name)
    a.e(f"s_cmp_ge_u32 s2, {NWG}")
    a.e(f"s_cbranch_scc1 {END}")
    a.e(f"s_load_dwordx2 s[4:5], s[0:1], {KA[src[0]]}")
    a.e(f"s_load_dwordx2 s[8:9], s[0:1], {KA[dst[0]]}")
    a.e("v_and_b32 v1, 63, v0")
    a.e("v_lshrrev_b32 v2, 6, v0")
    a.e("s_nop 0")
    a.e("v_readfirstlane_b32 s28, v2")
    a.e("s_waitcnt lgkmcnt(0)")
    srd(a, 4, *src); srd(a, 8, *dst)
    a.e("s_lshl_b32 s24, s2, 2")
    a.e("s_add_u32 s24, s24, s28")
    a.e(f"s_mul_i32 s24, s24, {RPW}")
    a.e(f"s_mul_i32 s25, s24, {lds_}")
    a.e(f"s_mul_i32 s26, s24, {ldd}")
    a.e("v_lshlrev_b32 v3, 4, v1")
    a.e("v_mov_b32 v4, 0x3f803f80")
    nch = n // 8
    NL = (nch + 63) // 64
    rem = nch - 64 * (NL - 1)
    if rem < 64:
        a.e(f"v_cmp_gt_u32 s[30:31], {rem}, v1")
    R = 16
    for r in range(RPW):
        for j in range(NL):
            reg = R + 4 * (r * NL + j)
            if j == NL - 1 and rem < 64:
                for d in range(4): a.e(f"v_mov_b32 v{reg+d}, 0")
                a.e("s_mov_b64 exec, s[30:31]")
            a.e(f"buffer_load_dwordx4 v[{reg}:{reg+3}], v3, s[4:7], s25 offen offset:{1024*j}")
            if j == NL - 1 and rem < 64:
                a.e("s_mov_b64 exec, -1")
        a.e(f"s_add_u32 s25, s25, {lds_}")
    for r in range(RPW):
        a.e(f"v_mov_b32 v{6+2*r}, 0"); a.e(f"v_mov_b32 v{7+2*r}, 0")
    for r in range(RPW):
        a.e(f"s_waitcnt vmcnt({(RPW-1-r)*NL})")
        for j in range(NL):
            for d in range(4):
                reg = R + 4 * (r * NL + j) + d
                a.e(f"v_dot2_f32_bf16 v{6+2*r}, v{reg}, v4, v{6+2*r}")
                a.e(f"v_dot2_f32_bf16 v{7+2*r}, v{reg}, v{reg}, v{7+2*r}")
    a.e("s_nop 3")
    wave_allreduce_add(a, list(range(6, 6 + 2*RPW)), 10)
    for r in range(RPW):
        stats_finish(a, 6+2*r, 7+2*r, n, 10)
        ln_xform(a, range(R + 4*r*NL, R + 4*(r+1)*NL), 6+2*r, 7+2*r, 10, 11)
        for j in range(NL):
            reg = R + 4 * (r * NL + j)
            if j == NL - 1 and rem < 64: a.e("s_mov_b64 exec, s[30:31]")
            a.e(f"buffer_store_dwordx4 v[{reg}:{reg+3}], v3, s[8:11], s26 offen offset:{1024*j}")
            if j == NL - 1 and rem < 64: a.e("s_mov_b64 exec, -1")
        a.e(f"s_add_u32 s26, s26, {ldd}")
    a.lab(END)
    a.e("s_endpgm")
    return NWG, 0, 40

import os
STAMP = os.environ.get("STAMP", "")
def stamp(a, name, idx):
    if STAMP and STAMP in name and idx < 16:
        a.e(f"s_memtime s[{60+2*idx}:{61+2*idx}]")
def stamp_store(a, name, n):
    if STAMP and STAMP in name:
        L = a.uniq("nost")
        a.e("s_waitcnt lgkmcnt(0) vmcnt(0)")
        a.e(f"s_memtime s[{60+2*n}:{61+2*n}]")
        a.e(f"s_load_dwordx2 s[56:57], s[0:1], 72")
        a.e("s_waitcnt lgkmcnt(0)")
        a.e("s_mov_b32 s58, 256"); a.e("s_mov_b32 s59, 0x00020000")
        a.e("s_cmp_lg_u32 s2, 5"); a.e(f"s_cbranch_scc1 {L}")
        a.e("s_cmp_lg_u32 s28, 0"); a.e(f"s_cbranch_scc1 {L}")
        a.e("v_mov_b32 v1, 0")
        for i in range(n + 1):
            a.e(f"s_sub_u32 s92, s{60+2*i}, s60")
            a.e("v_mov_b32 v2, s92")
            a.e(f"buffer_store_dword v2, v1, s[56:59], 0 offen offset:{4*i}")
        a.lab(L)
def gen_gemm(a, name, M, N, K, MT, NT, NS, NW, act, wt, lda, ldb, epi, amode='plain'):
    MC = M // MT; NC = N // NT; NWG = MC * NC
    WN = NW // 2; NPW = NT // WN
    MTW = MT // 64; NTW = NPW // 32
    ASZ = MT * 128; WROW = NT * 2; WSZ = 64 * WROW; STG = ASZ + WSZ
    lds = NS * STG
    NK = K // 64
    PA = MT // 8 // NW; PB = NT // 8 // NW
    if amode == 'ln': PA = 0
    PPW = PA + PB
    AR = 128
    brows = 1024 // WROW
    END = a.uniq("end")
    a.l.append(f".globl {name}\n.p2align 8\n.type {name},@function")
    a.lab(name)
    a.e(f"s_cmp_ge_u32 s2, {NWG}")
    a.e(f"s_cbranch_scc1 {END}")
    stamp(a, name, 0)
    a.e(f"s_load_dwordx2 s[4:5], s[0:1], {KA[act[0]]}")
    a.e(f"s_load_dwordx2 s[8:9], s[0:1], {KA[wt[0]]}")
    a.e(f"s_load_dwordx2 s[12:13], s[0:1], {KA[epi['out'][0]]}")
    if 'aux' in epi: a.e(f"s_load_dwordx2 s[16:17], s[0:1], {KA[epi['aux'][0]]}")
    if 'aux3' in epi: a.e(f"s_load_dwordx2 s[48:49], s[0:1], {KA[epi['aux3'][0]]}")
    a.e(f"s_and_b32 s24, s2, {MC-1}")
    a.e(f"s_lshr_b32 s25, s2, {MC.bit_length()-1}")
    a.e(f"s_mul_i32 s26, s24, {MT}")
    a.e(f"s_mul_i32 s27, s25, {NT}")
    a.e("v_and_b32 v1, 63, v0")
    a.e("v_lshrrev_b32 v2, 6, v0")
    a.e("s_nop 0")
    a.e("v_readfirstlane_b32 s28, v2")
    a.e("s_waitcnt lgkmcnt(0)")
    srd(a, 4, *act); srd(a, 8, *wt); srd(a, 12, *epi['out'])
    if 'aux' in epi: srd(a, 16, *epi['aux'])
    if 'aux3' in epi: srd(a, 48, *epi['aux3'])
    a.e("s_and_b32 s29, s28, 1")
    a.e("s_lshr_b32 s30, s28, 1")
    a.e("v_lshrrev_b32 v5, 3, v1")
    a.e("v_lshrrev_b32 v6, 4, v1")
    a.e("s_lshl_b32 s31, s29, 2")
    a.e("v_add_u32 v7, s31, v6")
    a.e("v_and_b32 v7, 7, v7")
    a.e("v_and_b32 v8, 7, v1")
    a.e("v_xor_b32 v7, v7, v8")
    a.e(f"v_mul_u32_u24 v3, {lda}, v5")
    a.e("v_lshl_add_u32 v3, v7, 4, v3")
    if NT == 128:
        a.e("v_and_b32 v8, 15, v1")
        a.e("v_lshlrev_b32 v7, 2, v6")
        a.e("v_xor_b32 v7, v7, v8")
        a.e(f"v_mul_u32_u24 v4, {ldb}, v6")
    else:
        a.e("v_bfe_u32 v7, v1, 4, 1")
        a.e("v_lshlrev_b32 v7, 2, v7")
        a.e("v_xor_b32 v7, v7, v8")
        a.e(f"v_mul_u32_u24 v4, {ldb}, v5")
    a.e("v_lshl_add_u32 v4, v7, 4, v4")
    a.e("s_lshl_b32 s31, s28, 3")
    a.e("s_add_u32 s31, s31, s26")
    a.e(f"s_mul_i32 s32, s31, {lda}")
    for i in range(1, PA): a.e(f"s_add_u32 s{32+i}, s32, {8*NW*i*lda}")
    a.e(f"s_mul_i32 s36, s28, {brows*ldb}")
    a.e("s_lshl_b32 s31, s27, 1")
    a.e("s_add_u32 s36, s36, s31")
    for i in range(1, PB): a.e(f"s_add_u32 s{36+i}, s36, {NW*brows*i*ldb}")
    a.e("s_lshl_b32 s45, s28, 10")
    a.e("v_and_b32 v9, 31, v1")
    a.e(f"s_mul_i32 s31, s29, {MT//2}")
    a.e("v_add_u32 v9, s31, v9")
    a.e("v_lshrrev_b32 v14, 5, v1")
    a.e("v_bfe_u32 v15, v1, 1, 3")
    a.e("v_xor_b32 v15, v15, v14")
    a.e("v_lshlrev_b32 v16, 7, v9")
    for ks in range(4):
        a.e(f"v_xor_b32 v17, {2*ks}, v15")
        a.e(f"v_lshl_add_u32 v{10+ks}, v17, 4, v16")
    a.e("v_bfe_u32 v15, v1, 2, 2")
    a.e("v_lshl_add_u32 v16, v14, 3, v15")
    a.e(f"v_mul_u32_u24 v16, {WROW}, v16")
    a.e("v_bfe_u32 v17, v1, 4, 1")
    a.e("v_lshlrev_b32 v17, 1, v17")
    a.e("v_bfe_u32 v18, v1, 1, 1")
    a.e("v_add_u32 v17, v17, v18")
    a.e(f"s_mul_i32 s31, s30, {NPW//8}")
    a.e("v_add_u32 v17, s31, v17")
    if NT == 128: a.e("v_lshlrev_b32 v15, 2, v15")
    else:
        a.e("v_bfe_u32 v15, v1, 3, 1"); a.e("v_lshlrev_b32 v15, 2, v15")
    a.e("v_and_b32 v18, 1, v1")
    a.e("v_lshl_add_u32 v16, v18, 3, v16")
    a.e(f"v_add_u32 v16, {ASZ}, v16")
    for nt in range(NTW):
        a.e(f"v_add_u32 v18, {4*nt}, v17")
        a.e("v_xor_b32 v18, v18, v15")
        a.e(f"v_lshl_add_u32 v{20+nt}, v18, 4, v16")
    ACC = 64
    FA = [32, 48]; FW = [40, 56]
    T0, T1 = 28, 29
    for r in range(ACC, ACC + 16*MTW*NTW): a.e(f"v_mov_b32 v{r}, 0")
    def dma_groups(tile):
        slot = tile % NS
        g = []
        for i in range(PA):
            g.append([f"s_add_u32 m0, s45, {slot*STG + 1024*NW*i}",
                      f"s_add_u32 s46, s{32+i}, {tile*128}",
                      f"buffer_load_dwordx4 v3, s[4:7], s46 offen lds"])
        if amode == 'ln':
            for i in range(2):
                r = AR + 4*(8*i + tile)
                gg = []
                for d in range(4):
                    gg += [f"v_lshlrev_b32 v{124}, 16, v{r+d}", f"v_and_b32 v{125}, 0xffff0000, v{r+d}",
                           f"v_fma_f32 v124, v124, v{121+2*i}, -v{120+2*i}", f"v_fma_f32 v125, v125, v{121+2*i}, -v{120+2*i}",
                           f"v_cvt_pk_bf16_f32 v{r+d}, v124, v125"]
                gg += [f"v_add_u32 v31, {slot*STG + 8192*i}, v30", f"ds_write_b128 v31, v[{r}:{r+3}]"]
                g.append(gg)
        for i in range(PB):
            g.append([f"s_add_u32 m0, s45, {slot*STG + ASZ + 1024*NW*i}",
                      f"s_add_u32 s46, s{36+i}, {tile*64*ldb}",
                      f"buffer_load_dwordx4 v4, s[8:11], s46 offen lds"])
        return g
    def dma(tile):
        for g in dma_groups(tile):
            for x in g: a.e(x)
    def frag_reads(ks, st):
        for mt in range(MTW):
            a.e(f"ds_read_b128 v[{FA[st]+4*mt}:{FA[st]+4*mt+3}], v{22+ks} offset:{mt*4096}")
        for nt in range(NTW):
            a.e(f"ds_read_b64_tr_b16 v[{FW[st]+4*nt}:{FW[st]+4*nt+1}], v{26+nt} offset:{ks*16*WROW}")
            a.e(f"ds_read_b64_tr_b16 v[{FW[st]+4*nt+2}:{FW[st]+4*nt+3}], v{26+nt} offset:{ks*16*WROW + 4*WROW}")
    NRD = MTW + 2*NTW
    def compute(tile, swap, extra):
        slot = tile % NS
        for ks in range(4): a.e(f"v_add_u32 v{22+ks}, {slot*STG}, v{10+ks}")
        for nt in range(NTW): a.e(f"v_add_u32 v{26+nt}, {slot*STG}, v{20+nt}")
        frag_reads(0, 0)
        for ks in range(4):
            st = ks & 1
            if ks < 3:
                frag_reads(ks+1, st ^ 1)
                a.e(f"s_waitcnt lgkmcnt({NRD})")
            else:
                a.e("s_waitcnt lgkmcnt(0)")
            for nt in range(NTW):
                for mt in range(MTW):
                    acc = ACC + 16*(nt*MTW + mt)
                    fa = f"v[{FA[st]+4*mt}:{FA[st]+4*mt+3}]"; fw = f"v[{FW[st]+4*nt}:{FW[st]+4*nt+3}]"
                    if swap: a.e(f"v_mfma_f32_32x32x16_bf16 v[{acc}:{acc+15}], {fa}, {fw}, v[{acc}:{acc+15}]")
                    else:    a.e(f"v_mfma_f32_32x32x16_bf16 v[{acc}:{acc+15}], {fw}, {fa}, v[{acc}:{acc+15}]")
                    if extra:
                        for x in extra.pop(0): a.e(x)
        while extra:
            for x in extra.pop(0): a.e(x)
    def mainloop(swap):
        stamp(a, name, 1)
        if amode == 'ln':
            assert NW == 8 and MT == 128 and NK == 8
            for t in range(NS-1):
                for g in dma_groups(t)[2:]:
                    for x in g: a.e(x)
            a.e("v_lshrrev_b32 v30, 3, v0")
            a.e("v_and_b32 v31, 7, v0")
            a.e(f"v_mul_u32_u24 v5, {lda}, v30")
            a.e("v_lshl_add_u32 v5, v31, 4, v5")
            a.e(f"s_mul_i32 s46, s26, {lda}")
            a.e(f"s_add_u32 s47, s46, {64*lda}")
            for i in range(2):
                for kt in range(8):
                    r = AR + 4*(8*i + kt)
                    a.e(f"buffer_load_dwordx4 v[{r}:{r+3}], v5, s[4:7], s{46+i} offen offset:{128*kt}")
            a.e("v_bfe_u32 v5, v0, 4, 3")
            a.e("v_xor_b32 v31, v31, v5")
            a.e("v_lshlrev_b32 v30, 7, v30")
            a.e("v_lshl_add_u32 v30, v31, 4, v30")
            a.e("v_mov_b32 v5, 0x3f803f80")
            for i in range(4): a.e(f"v_mov_b32 v{32+i}, 0")
            for i in range(2):
                for kt in range(8):
                    a.e(f"s_waitcnt vmcnt({15 - 8*i - kt})")
                    for d in range(4):
                        r = AR + 4*(8*i + kt) + d
                        a.e(f"v_dot2_f32_bf16 v{32+2*i}, v{r}, v5, v{32+2*i}")
                        a.e(f"v_dot2_f32_bf16 v{33+2*i}, v{r}, v{r}, v{33+2*i}")
            a.e("s_nop 3")
            for qp in ("quad_perm:[1,0,3,2]", "quad_perm:[2,3,0,1]", "row_half_mirror"):
                for i in range(4):
                    a.e(f"v_add_f32_dpp v{32+i}, v{32+i}, v{32+i} {qp} row_mask:0xf bank_mask:0xf")
                a.e("s_nop 1")
            for i in range(2):
                stats_finish(a, 32+2*i, 33+2*i, 512, 36)
                a.e(f"v_mul_f32 v{120+2*i}, v{32+2*i}, v{33+2*i}")
                a.e(f"v_mov_b32 v{121+2*i}, v{33+2*i}")
            for t in range(NS-1):
                for g in dma_groups(t)[:2]:
                    for x in g: a.e(x)
        else:
            for t in range(min(NS-1, NK)): dma(t)
        stamp(a, name, 2)
        for t in range(NK):
            ahead = min(NK - 1, t + NS - 2) - t
            a.e(f"s_waitcnt vmcnt({ahead*PPW}) lgkmcnt(0)")
            a.e("s_barrier")
            if t < 9: stamp(a, name, 3 + t)
            if t == NK - 1 and early_aux: early_aux()
            compute(t, swap, dma_groups(t + NS - 1) if t + NS - 1 < NK else [])
        stamp(a, name, 12)
        a.e("s_nop 15")
    kind = epi['kind']
    SA = 96
    early_aux = None
    if kind in ('res', 'gate'):
        def early_aux():
            lda2 = epi['ldaux']
            a.e(f"v_mul_u32_u24 v18, {lda2}, v9")
            a.e("v_lshl_add_u32 v18, v14, 3, v18")
            a.e(f"s_mul_i32 s31, s30, {NPW*2}")
            a.e("v_add_u32 v18, s31, v18")
            a.e(f"s_mul_i32 s43, s26, {lda2}")
            a.e("s_lshl_b32 s42, s27, 1")
            a.e("s_add_u32 s43, s43, s42")
            if kind == 'gate':
                a.e("v_add_u32 v19, s26, v9")
                a.e("v_lshlrev_b32 v19, 1, v19")
                for mt in range(MTW):
                    a.e(f"buffer_load_ushort v{116+mt}, v19, s[48:51], 0 offen offset:{mt*64}")
            for mt in range(MTW):
                a.e(f"s_add_u32 s44, s43, {mt*32*lda2}")
                for nt in range(NTW):
                    for rq in range(4):
                        r = SA + 8*(mt*NTW + nt) + 2*rq
                        a.e(f"buffer_load_dwordx2 v[{r}:{r+1}], v18, s[16:19], s44 offen offset:{nt*64+rq*16}")
    if kind == 'qkv':
        LV = a.uniq("vpath")
        a.e("s_cmp_ge_u32 s25, 8")
        a.e(f"s_cbranch_scc1 {LV}")
        mainloop(False)
        a.e("v_lshlrev_b32 v17, 5, v9")
        a.e("v_lshl_add_u32 v17, v14, 3, v17")
        a.e(f"s_mul_i32 s31, s30, {NPW//16*65536}")
        a.e("v_add_u32 v17, s31, v17")
        a.e("s_lshr_b32 s41, s25, 2")
        a.e("s_lshl_b32 s41, s41, 21")
        a.e("s_and_b32 s42, s25, 3")
        a.e("s_lshl_b32 s42, s42, 19")
        a.e("s_add_u32 s41, s41, s42")
        a.e("s_lshl_b32 s42, s26, 5")
        a.e("s_add_u32 s41, s41, s42")
        for nt in range(NTW):
            for mt in range(MTW):
                acc = ACC + 16*(nt*MTW + mt)
                for rq in range(4):
                    r = acc + 4*rq
                    a.e(f"v_cvt_pk_bf16_f32 v{T0}, v{r}, v{r+1}")
                    a.e(f"v_cvt_pk_bf16_f32 v{T1}, v{r+2}, v{r+3}")
                    a.e(f"s_add_u32 s42, s41, {mt*1024 + (2*nt + (rq>>1))*65536}")
                    a.e(f"buffer_store_dwordx2 v[{T0}:{T1}], v17, s[12:15], s42 offen offset:{(rq&1)*16}")
                    a.e("s_nop 1")
        a.e(f"s_branch {END}")
        a.lab(LV)
        mainloop(True)
        a.e("v_and_b32 v17, 31, v1")
        a.e(f"s_mul_i32 s31, s30, {NPW}")
        a.e("v_add_u32 v17, s31, v17")
        a.e("v_lshlrev_b32 v17, 12, v17")
        a.e("v_lshl_add_u32 v17, v14, 3, v17")
        a.e("s_lshl_b32 s31, s29, 7")
        a.e("v_add_u32 v17, s31, v17")
        a.e("s_sub_u32 s41, s27, 1024")
        a.e("s_lshl_b32 s41, s41, 12")
        a.e(f"s_add_u32 s41, s41, {WS_VT}")
        a.e("s_lshl_b32 s42, s26, 1")
        a.e("s_add_u32 s41, s41, s42")
        for nt in range(NTW):
            for mt in range(MTW):
                acc = ACC + 16*(nt*MTW + mt)
                for rq in range(4):
                    r = acc + 4*rq
                    a.e(f"v_cvt_pk_bf16_f32 v{T0}, v{r}, v{r+1}")
                    a.e(f"v_cvt_pk_bf16_f32 v{T1}, v{r+2}, v{r+3}")
                    a.e(f"s_add_u32 s42, s41, {nt*32*4096 + mt*64}")
                    a.e(f"buffer_store_dwordx2 v[{T0}:{T1}], v17, s[12:15], s42 offen offset:{rq*16}")
                    a.e("s_nop 1")
    else:
        mainloop(False)
        ldo = epi['ldo']
        a.e(f"v_mul_u32_u24 v17, {ldo}, v9")
        a.e("v_lshl_add_u32 v17, v14, 3, v17")
        a.e(f"s_mul_i32 s31, s30, {NPW*2}")
        a.e("v_add_u32 v17, s31, v17")
        a.e(f"s_mul_i32 s41, s26, {ldo}")
        a.e("s_lshl_b32 s42, s27, 1")
        a.e("s_add_u32 s41, s41, s42")
        E = 48
        if kind in ('res', 'gate'):
            a.e("s_waitcnt vmcnt(0)")
        for mt in range(MTW):
            a.e(f"s_add_u32 s42, s41, {mt*32*ldo}")
            if kind == 'gate':
                a.e(f"v_lshlrev_b32 v{116+mt}, 16, v{116+mt}")
            for nt in range(NTW):
                acc = ACC + 16*(nt*MTW + mt)
                for rq in range(4):
                    r = acc + 4*rq
                    a.e(f"v_cvt_pk_bf16_f32 v{T0}, v{r}, v{r+1}")
                    a.e(f"v_cvt_pk_bf16_f32 v{T1}, v{r+2}, v{r+3}")
                    unpack2(a, E, E+1, T0); unpack2(a, E+2, E+3, T1)
                    if kind == 'res':
                        x0 = SA + 8*(mt*NTW + nt) + 2*rq
                        unpack2(a, E+4, E+5, x0); unpack2(a, E+6, E+7, x0+1)
                        for j in range(4): a.e(f"v_add_f32 v{E+j}, v{E+j}, v{E+4+j}")
                    elif kind == 'gate':
                        x0 = SA + 8*(mt*NTW + nt) + 2*rq
                        for j in range(4): a.e(f"v_add_f32 v{E+j}, v{E+j}, v{116+mt}")
                        a.e(f"v_cvt_pk_bf16_f32 v{T0}, v{E}, v{E+1}")
                        a.e(f"v_cvt_pk_bf16_f32 v{T1}, v{E+2}, v{E+3}")
                        unpack2(a, E, E+1, T0); unpack2(a, E+2, E+3, T1)
                        unpack2(a, E+4, E+5, x0); unpack2(a, E+6, E+7, x0+1)
                        for j in range(4): a.e(f"v_mul_f32 v{E+j}, v{E+j}, v{E+4+j}")
                    elif kind == 'gelu':
                        c1 = -2.0 * 1.4426950408889634 * 0.7978845608028654
                        for j in range(4):
                            a.e(f"v_mul_f32 v{E+4+j}, v{E+j}, v{E+j}")
                            a.e(f"v_mul_f32 v{E+4+j}, 0x{f32hex(0.044715*c1)}, v{E+4+j}")
                            a.e(f"v_add_f32 v{E+4+j}, 0x{f32hex(c1)}, v{E+4+j}")
                            a.e(f"v_mul_f32 v{E+4+j}, v{E+4+j}, v{E+j}")
                            a.e(f"v_exp_f32 v{E+4+j}, v{E+4+j}")
                        a.e("s_nop 0")
                        for j in range(4): a.e(f"v_add_f32 v{E+4+j}, 1.0, v{E+4+j}")
                        for j in range(4): a.e(f"v_rcp_f32 v{E+4+j}, v{E+4+j}")
                        a.e("s_nop 0")
                        for j in range(4): a.e(f"v_mul_f32 v{E+j}, v{E+j}, v{E+4+j}")
                    a.e(f"v_cvt_pk_bf16_f32 v{T0}, v{E}, v{E+1}")
                    a.e(f"v_cvt_pk_bf16_f32 v{T1}, v{E+2}, v{E+3}")
                    a.e(f"buffer_store_dwordx2 v[{T0}:{T1}], v17, s[12:15], s42 offen offset:{nt*64+rq*16}")
                    a.e("s_nop 1")
    stamp_store(a, name, 13)
    a.lab(END)
    a.e("s_endpgm")
    return NWG, lds, (192 if amode == 'ln' else 128), NW*64

def main():
    a = Asm()
    launches = []; kds = []
    def add(name, nwg, lds, nv, blk=256):
        launches.append(f"; @launch kernel={name} grid=({nwg},1,1) block=({blk},1,1) lds={lds}")
        kds.append(kd(name, nv))
    FUSE = os.environ.get("FUSE", "1") == "1"
    if not FUSE:
        add("k0_ln1_kernel", *gen_ln(a, "k0_ln1_kernel", ('x', 0, 2*MB), ('ws', WS_L1, 2*MB), 512, 1024, 1024))
    add("k1_qkv_kernel", *gen_gemm(a, "k1_qkv_kernel", S, 1536, 512, 128, 128, 4, 8, ('x', 0, 2*MB) if FUSE else ('ws', WS_L1, 2*MB), ('wqkv', 0, 512*1536*2), 1024, 3072,
                 dict(kind='qkv', out=('ws', WS_Q, 6*MB)), amode='ln' if FUSE else 'plain'))
    import attn2 as attn
    add("k2_attn_kernel", *attn.gen_attn(a, "k2_attn_kernel"))
    add("k3_wo_kernel", *gen_gemm(a, "k3_wo_kernel", S, 512, 512, 64, 64, 8, 4, ('ws', WS_O, 2*MB), ('wo', 0, 512*512*2), 1024, 1024,
                 dict(kind='res', out=('ws', WS_H, 2*MB), ldo=1024, aux=('x', 0, 2*MB), ldaux=1024)))
    if not FUSE:
        add("k3b_ln2_kernel", *gen_ln(a, "k3b_ln2_kernel", ('ws', WS_H, 2*MB), ('ws', WS_L2, 2*MB), 512, 1024, 1024))
    add("k4_win_kernel", *gen_gemm(a, "k4_win_kernel", S, 1792, 512, 128, 128, 4, 8, ('ws', WS_H, 2*MB) if FUSE else ('ws', WS_L2, 2*MB), ('w_in', 0, 512*1792*2), 1024, 3584,
                 dict(kind='gelu', out=('ws', WS_Z, S*1792*2), ldo=3584), amode='ln' if FUSE else 'plain'))
    add("k4b_lnz_kernel", *gen_ln(a, "k4b_lnz_kernel", ('ws', WS_Z + 896*2, S*1792*2 - 896*2), ('ws', WS_ZN, S*896*2), 896, 3584, 1792))
    add("k5_sp_kernel", *gen_gemm(a, "k5_sp_kernel", S, 896, 2048, 64, 128, 6, 8, ('w_sp', 0, S*S*2), ('ws', WS_ZN, S*896*2), 4096, 1792,
                 dict(kind='gate', out=('ws', WS_Y, S*896*2), ldo=1792, aux=('ws', WS_Z, S*1792*2), ldaux=3584, aux3=('b_sp', 0, S*2))))
    add("k6_out_kernel", *gen_gemm(a, "k6_out_kernel", S, 512, 896, 64, 64, 8, 4, ('ws', WS_Y, S*896*2), ('w_out', 0, 896*512*2), 1792, 1024,
                 dict(kind='res', out=('out', 0, 2*MB), ldo=1024, aux=('ws', WS_H, 2*MB), ldaux=1024)))
    hdr = open(f"cdna_kernels/{NAME}.s.ref").read().split("; @launch")[0]
    out = hdr + "\n".join(launches) + "\n" + '.amdgcn_target "amdgcn-amd-amdhsa--gfx950"\n.text\n' + a.text() + "".join(kds)
    open(sys.argv[1] if len(sys.argv) > 1 else f"cdna_kernels/{NAME}.s", "w").write(out)

if __name__ == "__main__":
    sys.path.insert(0, "dev")
    main()
```

```python
from gen2 import *
import os
def gen_attn(a, name):
    NWG = 32 * 32
    KB = 0; VB = 320 * 32; VROW = 41 * 16
    lds = VB + 11 * 1024
    END = a.uniq("end")
    a.l.append(f".globl {name}\n.p2align 8\n.type {name},@function")
    a.lab(name)
    a.e(f"s_cmp_ge_u32 s2, {NWG}")
    a.e(f"s_cbranch_scc1 {END}")
    stamp(a, name, 0)
    a.e(f"s_load_dwordx2 s[4:5], s[0:1], {KA['ws']}")
    a.e(f"s_load_dwordx2 s[44:45], s[0:1], {KA['w_sp']}")
    a.e(f"s_load_dwordx2 s[48:49], s[0:1], {KA['w_in']}")
    a.e(f"s_load_dwordx2 s[52:53], s[0:1], {KA['wo']}")
    a.e(f"s_load_dwordx2 s[56:57], s[0:1], {KA['w_out']}")
    a.e("s_and_b32 s24, s2, 31")
    a.e("s_lshr_b32 s25, s2, 5")
    a.e("v_and_b32 v1, 63, v0")
    a.e("v_lshrrev_b32 v2, 6, v0")
    a.e("s_nop 0")
    a.e("v_readfirstlane_b32 s28, v2")
    a.e("s_waitcnt lgkmcnt(0)")
    a.e("s_mov_b32 s8, s4"); a.e("s_mov_b32 s9, s5")
    a.e("s_mov_b32 s12, s4"); a.e("s_mov_b32 s13, s5")
    a.e("s_mov_b32 s16, s4"); a.e("s_mov_b32 s17, s5")
    a.e("s_lshl_b32 s26, s25, 16")
    a.e(f"s_add_u32 s4, s4, s26"); a.e("s_addc_u32 s5, s5, 0")
    a.e("s_mov_b32 s6, 0x10000"); a.e("s_mov_b32 s7, 0x00020000")
    a.e(f"s_add_u32 s27, s26, {WS_K}")
    a.e(f"s_add_u32 s8, s8, s27"); a.e("s_addc_u32 s9, s9, 0")
    a.e("s_mov_b32 s10, 0x10000"); a.e("s_mov_b32 s11, 0x00020000")
    a.e(f"s_add_u32 s27, s26, {WS_VT}")
    a.e(f"s_add_u32 s12, s12, s27"); a.e("s_addc_u32 s13, s13, 0")
    a.e("s_mov_b32 s14, 0x10000"); a.e("s_mov_b32 s15, 0x00020000")
    srd(a, 16, 'ws', WS_O, 2*MB)
    a.e("s_lshl_b32 s29, s24, 6")
    a.e("s_sub_i32 s31, s29, 256")
    a.e("v_lshlrev_b32 v3, 4, v1")
    a.e("s_lshl_b32 s32, s31, 5")
    a.e("s_lshl_b32 s33, s28, 10")
    a.e("s_add_u32 s32, s32, s33")
    a.e("v_add_u32 v4, s32, v3")
    for i in range(3):
        L = a.uniq("sk")
        if i == 2:
            a.e("s_cmp_ge_u32 s28, 2"); a.e(f"s_cbranch_scc1 {L}")
        a.e(f"s_add_u32 m0, s33, {KB + 4096*i}")
        a.e("s_nop 0")
        a.e(f"buffer_load_dwordx4 v4, s[8:11], 0 offen lds")
        a.e("v_add_u32 v4, 0x1000, v4")
        if i == 2: a.lab(L)
    a.e("s_lshl_b32 s34, s31, 1")
    a.e(f"s_mov_b32 s35, {(1 << 32) // 41 + 1}")
    for i in range(3):
        L = a.uniq("sv")
        if i == 2:
            a.e("s_cmp_ge_u32 s28, 3"); a.e(f"s_cbranch_scc1 {L}")
        a.e(f"s_lshl_b32 s36, s28, 6")
        a.e(f"v_add_u32 v5, {256*i}, v1")
        a.e("v_add_u32 v5, s36, v5")
        a.e("v_mul_hi_u32 v6, v5, s35")
        a.e("v_mul_u32_u24 v7, 41, v6")
        a.e("v_sub_u32 v7, v5, v7")
        a.e("v_lshlrev_b32 v8, 12, v6")
        a.e("v_lshl_add_u32 v8, v7, 4, v8")
        a.e("v_add_u32 v8, s34, v8")
        a.e("v_cmp_lt_u32 vcc, 15, v6")
        a.e("s_nop 1")
        a.e("v_cndmask_b32 v8, v8, -1, vcc")
        a.e(f"s_add_u32 m0, s33, {VB + 4096*i}")
        a.e("s_nop 0")
        a.e(f"buffer_load_dwordx4 v8, s[12:15], 0 offen lds")
        if i == 2: a.lab(L)
    a.e("s_lshl_b32 s30, s28, 4")
    a.e("s_add_u32 s29, s29, s30")
    a.e("s_sub_i32 s31, s29, 256")
    a.e("v_and_b32 v2, 15, v1")
    a.e("v_lshrrev_b32 v3, 4, v1")
    a.e("v_lshlrev_b32 v4, 5, v2")
    a.e("v_lshl_add_u32 v4, v3, 3, v4")
    a.e("s_lshl_b32 s30, s29, 5")
    a.e("buffer_load_dwordx2 v[6:7], v4, s[4:7], s30 offen")
    a.e("s_lshl_b32 s36, s28, 9")
    a.e("v_add_u32 v4, s36, v4")
    a.e(f"v_mul_u32_u24 v5, {VROW}, v2")
    a.e("v_lshl_add_u32 v5, v3, 3, v5")
    a.e("s_lshl_b32 s36, s28, 5")
    a.e(f"s_add_u32 s36, s36, {VB}")
    a.e("v_add_u32 v5, s36, v5")
    KF = 20; SC = 56
    for r in range(SC, SC+68): a.e(f"v_mov_b32 v{r}, 0")
    for r in range(8, 12): a.e(f"v_mov_b32 v{r}, 0")
    a.e("v_mov_b32 v12, 0xff800000")
    a.e("v_lshlrev_b32 v13, 2, v3")
    a.e("v_sub_u32 v13, v13, v2")
    stamp(a, name, 1)
    a.e("s_waitcnt vmcnt(0)")
    stamp(a, name, 2)
    a.e("s_barrier")
    stamp(a, name, 3)
    for j in range(17):
        a.e(f"ds_read_b64 v[{KF+2*j}:{KF+2*j+1}], v4 offset:{512*j}")
    for j in range(17):
        a.e(f"s_waitcnt lgkmcnt({min(15, 16-j)})")
        a.e(f"v_mfma_f32_16x16x16_bf16 v[{SC+4*j}:{SC+4*j+3}], v[{KF+2*j}:{KF+2*j+1}], v[6:7], v[{SC+4*j}:{SC+4*j+3}]")
    a.e("s_nop 7")
    for r in range(4):
        a.e(f"v_cmp_gt_i32 vcc, {-r}, v13")
        a.e(f"v_cmp_le_i32 s[34:35], {-r}, v13")
        a.e(f"v_cmp_eq_i32 s[36:37], {-r}, v13")
        a.e("s_nop 1")
        a.e("s_or_b64 s[38:39], vcc, s[36:37]")
        a.e(f"v_cndmask_b32 v{SC+r}, v{SC+r}, v12, s[38:39]")
        a.e("s_andn2_b64 s[38:39], s[34:35], s[36:37]")
        a.e(f"v_cndmask_b32 v{SC+64+r}, v{SC+64+r}, v12, s[38:39]")
    for j in range(16):
        L = a.uniq("ok")
        a.e(f"s_add_i32 s32, s31, {16*j}")
        a.e("s_cmp_ge_i32 s32, 0")
        a.e(f"s_cbranch_scc1 {L}")
        for r in range(4): a.e(f"v_mov_b32 v{SC+4*j+r}, v12")
        a.lab(L)
    stamp(a, name, 4)
    a.e(f"v_max3_f32 v14, v{SC}, v{SC+1}, v{SC+2}")
    a.e(f"v_max3_f32 v15, v{SC+3}, v{SC+4}, v{SC+5}")
    rr = list(range(SC+6, SC+68))
    i = 0
    while len(rr) >= 2:
        t = 14 + (i & 1); i += 1
        a.e(f"v_max3_f32 v{t}, v{t}, v{rr[0]}, v{rr[1]}"); rr = rr[2:]
    a.e("v_max_f32 v14, v14, v15")
    a.e("v_mov_b32 v15, v14")
    a.e("s_nop 1")
    a.e("v_permlane32_swap_b32 v15, v14")
    a.e("v_max_f32 v14, v14, v15")
    a.e("v_mov_b32 v15, v14")
    a.e("s_nop 1")
    a.e("v_permlane16_swap_b32 v15, v14")
    a.e("v_max_f32 v14, v14, v15")
    c = 0.25 * 1.4426950408889634
    a.e(f"s_mov_b32 s40, 0x{f32hex(c)}")
    a.e("v_mul_f32 v14, s40, v14")
    a.e("v_mov_b32 v16, 0")
    a.e("v_mov_b32 v17, 0")
    VS = [18, 54]
    stamp(a, name, 5)
    for j in range(17):
        r = SC + 4*j
        for k in range(4): a.e(f"v_fma_f32 v{r+k}, v{r+k}, s40, -v14")
        for k in range(4): a.e(f"v_exp_f32 v{r+k}, v{r+k}")
        a.e(f"ds_read_b64 v[{VS[j&1]}:{VS[j&1]+1}], v5 offset:{32*j}")
        a.e(f"v_add_f32 v16, v16, v{r}")
        a.e(f"v_add_f32 v17, v17, v{r+1}")
        a.e(f"v_add_f32 v16, v16, v{r+2}")
        a.e(f"v_add_f32 v17, v17, v{r+3}")
        a.e(f"v_cvt_pk_bf16_f32 v{KF+2*j}, v{r}, v{r+1}")
        a.e(f"v_cvt_pk_bf16_f32 v{KF+2*j+1}, v{r+2}, v{r+3}")
        a.e("s_waitcnt lgkmcnt(0)")
        a.e("s_nop 1")
        a.e(f"v_mfma_f32_16x16x16_bf16 v[8:11], v[{VS[j&1]}:{VS[j&1]+1}], v[{KF+2*j}:{KF+2*j+1}], v[8:11]")
    if os.environ.get("PF", "1") == "1":
        a.e("s_lshl_b32 s41, s2, 8")
        a.e("v_add_u32 v124, s41, v0")
        a.e("v_lshlrev_b32 v124, 4, v124")
        a.e(f"s_mov_b32 s46, {S*S*2}"); a.e("s_mov_b32 s47, 0x00020000")
        a.e(f"s_mov_b32 s50, {512*1792*2}"); a.e("s_mov_b32 s51, 0x00020000")
        a.e(f"s_mov_b32 s54, {512*512*2}"); a.e("s_mov_b32 s55, 0x00020000")
        a.e(f"s_mov_b32 s58, {896*512*2}"); a.e("s_mov_b32 s59, 0x00020000")
        a.e("s_mov_b32 s41, 0x400000")
        a.e("buffer_load_dwordx4 v[124:127], v124, s[44:47], 0 offen")
        a.e("buffer_load_dwordx4 v[124:127], v124, s[44:47], s41 offen")
        a.e("buffer_load_dwordx4 v[124:127], v124, s[48:51], 0 offen")
        a.e("buffer_load_dwordx4 v[124:127], v124, s[52:55], 0 offen")
        a.e("buffer_load_dwordx4 v[124:127], v124, s[56:59], 0 offen")
    a.e("v_add_f32 v16, v16, v17")
    a.e("v_mov_b32 v15, v16")
    a.e("s_nop 1")
    a.e("v_permlane32_swap_b32 v15, v16")
    a.e("v_add_f32 v16, v16, v15")
    a.e("v_mov_b32 v15, v16")
    a.e("s_nop 1")
    a.e("v_permlane16_swap_b32 v15, v16")
    a.e("v_add_f32 v16, v16, v15")
    a.e("v_rcp_f32 v16, v16")
    a.e("s_nop 7")
    for r in range(4): a.e(f"v_mul_f32 v{8+r}, v{8+r}, v16")
    a.e("v_cvt_pk_bf16_f32 v8, v8, v9")
    a.e("v_cvt_pk_bf16_f32 v9, v10, v11")
    a.e("v_lshlrev_b32 v4, 10, v2")
    a.e("v_lshl_add_u32 v4, v3, 3, v4")
    a.e("s_lshl_b32 s30, s29, 10")
    a.e("s_lshl_b32 s31, s25, 5")
    a.e("s_add_u32 s30, s30, s31")
    a.e("buffer_store_dwordx2 v[8:9], v4, s[16:19], s30 offen")
    stamp_store(a, name, 6)
    a.lab(END)
    a.e("s_endpgm")
    return NWG, lds, 128
```

```python
import sys, struct
NAME = "sequential_preLN__sliding_block__mixer_gmlp__prompt"
MB = 1 << 20
WS_Q, WS_K, WS_VT, WS_O, WS_H, WS_Z, WS_Y = 0, 2*MB, 4*MB, 6*MB, 8*MB, 10*MB, 18*MB
WS_L1, WS_L2, WS_ZN = 22*MB, 24*MB, 26*MB
KA = dict(x=0, wqkv=8, wo=16, w_in=32, w_sp=40, b_sp=48, w_out=56, out=64, dbg=72, ws=80)
S, D = 2048, 512

class Asm:
    def __init__(self):
        self.l = []; self.n = 0
    def e(self, s): self.l.append("    " + s)
    def lab(self, s): self.l.append(s + ":")
    def uniq(self, p):
        self.n += 1
        return f"L_{p}_{self.n}"
    def text(self): return "\n".join(self.l) + "\n"

def f32hex(f): return "%08x" % struct.unpack("<I", struct.pack("<f", f))[0]

def srd(a, sreg, karg, off, size):
    if off:
        a.e(f"s_add_u32 s{sreg}, s{sreg}, 0x{off:x}")
        a.e(f"s_addc_u32 s{sreg+1}, s{sreg+1}, 0")
    a.e(f"s_mov_b32 s{sreg+2}, 0x{size:x}")
    a.e(f"s_mov_b32 s{sreg+3}, 0x00020000")

def kd(name, nvgpr, nsgpr=96):
    nv = (nvgpr + 7) // 8 * 8
    return f""".section .rodata,"a"
.p2align 6
.amdhsa_kernel {name}
  .amdhsa_next_free_vgpr {nv}
  .amdhsa_next_free_sgpr {nsgpr}
  .amdhsa_accum_offset {nv}
  .amdhsa_group_segment_fixed_size 0
  .amdhsa_kernarg_size 88
  .amdhsa_user_sgpr_count 2
  .amdhsa_user_sgpr_kernarg_segment_ptr 1
  .amdhsa_system_sgpr_workgroup_id_x 1
.end_amdhsa_kernel
.text
"""

def unpack2(a, lo, hi, src):
    a.e(f"v_lshlrev_b32 v{lo}, 16, v{src}")
    a.e(f"v_and_b32 v{hi}, 0xffff0000, v{src}")

def ln_xform(a, regs, vm, vr, t0, t1):
    for r in regs:
        unpack2(a, t0, t1, r)
        a.e(f"v_sub_f32 v{t0}, v{t0}, v{vm}")
        a.e(f"v_sub_f32 v{t1}, v{t1}, v{vm}")
        a.e(f"v_cvt_pk_bf16_f32 v{r}, v{t0}, v{t1}")
        unpack2(a, t0, t1, r)
        a.e(f"v_mul_f32 v{t0}, v{t0}, v{vr}")
        a.e(f"v_mul_f32 v{t1}, v{t1}, v{vr}")
        a.e(f"v_cvt_pk_bf16_f32 v{r}, v{t0}, v{t1}")

def stats_finish(a, vs, vq, n, t):
    a.e(f"v_mul_f32 v{vs}, 0x{f32hex(1.0/n)}, v{vs}")
    a.e(f"v_mul_f32 v{vq}, 0x{f32hex(1.0/n)}, v{vq}")
    a.e(f"v_fma_f32 v{vq}, -v{vs}, v{vs}, v{vq}")
    a.e(f"v_max_f32 v{vq}, 0, v{vq}")
    a.e(f"v_cvt_pk_bf16_f32 v{t}, v{vs}, v{vq}")
    unpack2(a, vs, vq, t)
    a.e(f"v_add_f32 v{vq}, 0x{f32hex(1e-5)}, v{vq}")
    a.e(f"v_cvt_pk_bf16_f32 v{t}, v{vq}, v{vq}")
    a.e(f"v_lshlrev_b32 v{vq}, 16, v{t}")
    a.e(f"v_sqrt_f32 v{vq}, v{vq}")
    a.e("s_nop 0")
    a.e(f"v_cvt_pk_bf16_f32 v{t}, v{vq}, v{vq}")
    a.e(f"v_lshlrev_b32 v{vq}, 16, v{t}")
    a.e(f"v_rcp_f32 v{vq}, v{vq}")
    a.e("s_nop 0")

def wave_allreduce_add(a, regs, t):
    for qp in ("quad_perm:[1,0,3,2]", "quad_perm:[2,3,0,1]", "row_ror:4", "row_ror:8"):
        a.e("s_nop 1")
        for r in regs:
            a.e(f"v_add_f32_dpp v{r}, v{r}, v{r} {qp} row_mask:0xf bank_mask:0xf")
    for sw in ("v_permlane16_swap_b32", "v_permlane32_swap_b32"):
        for i, r in enumerate(regs): a.e(f"v_mov_b32 v{t+i}, v{r}")
        a.e("s_nop 1")
        for i, r in enumerate(regs): a.e(f"{sw} v{t+i}, v{r}")
        for i, r in enumerate(regs): a.e(f"v_add_f32 v{r}, v{r}, v{t+i}")

def gen_ln(a, name, src, dst, n, lds_, ldd):
    RPW = 2
    NWG = S // (4 * RPW)
    END = a.uniq("end")
    a.l.append(f".globl {name}\n.p2align 8\n.type {name},@function")
    a.lab(name)
    a.e(f"s_cmp_ge_u32 s2, {NWG}")
    a.e(f"s_cbranch_scc1 {END}")
    a.e(f"s_load_dwordx2 s[4:5], s[0:1], {KA[src[0]]}")
    a.e(f"s_load_dwordx2 s[8:9], s[0:1], {KA[dst[0]]}")
    a.e("v_and_b32 v1, 63, v0")
    a.e("v_lshrrev_b32 v2, 6, v0")
    a.e("s_nop 0")
    a.e("v_readfirstlane_b32 s28, v2")
    a.e("s_waitcnt lgkmcnt(0)")
    srd(a, 4, *src); srd(a, 8, *dst)
    a.e("s_lshl_b32 s24, s2, 2")
    a.e("s_add_u32 s24, s24, s28")
    a.e(f"s_mul_i32 s24, s24, {RPW}")
    a.e(f"s_mul_i32 s25, s24, {lds_}")
    a.e(f"s_mul_i32 s26, s24, {ldd}")
    a.e("v_lshlrev_b32 v3, 4, v1")
    a.e("v_mov_b32 v4, 0x3f803f80")
    nch = n // 8
    NL = (nch + 63) // 64
    rem = nch - 64 * (NL - 1)
    if rem < 64:
        a.e(f"v_cmp_gt_u32 s[30:31], {rem}, v1")
    R = 16
    for r in range(RPW):
        for j in range(NL):
            reg = R + 4 * (r * NL + j)
            if j == NL - 1 and rem < 64:
                for d in range(4): a.e(f"v_mov_b32 v{reg+d}, 0")
                a.e("s_mov_b64 exec, s[30:31]")
            a.e(f"buffer_load_dwordx4 v[{reg}:{reg+3}], v3, s[4:7], s25 offen offset:{1024*j}")
            if j == NL - 1 and rem < 64:
                a.e("s_mov_b64 exec, -1")
        a.e(f"s_add_u32 s25, s25, {lds_}")
    for r in range(RPW):
        a.e(f"v_mov_b32 v{6+2*r}, 0"); a.e(f"v_mov_b32 v{7+2*r}, 0")
    for r in range(RPW):
        a.e(f"s_waitcnt vmcnt({(RPW-1-r)*NL})")
        for j in range(NL):
            for d in range(4):
                reg = R + 4 * (r * NL + j) + d
                a.e(f"v_dot2_f32_bf16 v{6+2*r}, v{reg}, v4, v{6+2*r}")
                a.e(f"v_dot2_f32_bf16 v{7+2*r}, v{reg}, v{reg}, v{7+2*r}")
    a.e("s_nop 3")
    wave_allreduce_add(a, list(range(6, 6 + 2*RPW)), 10)
    for r in range(RPW):
        stats_finish(a, 6+2*r, 7+2*r, n, 10)
        ln_xform(a, range(R + 4*r*NL, R + 4*(r+1)*NL), 6+2*r, 7+2*r, 10, 11)
        for j in range(NL):
            reg = R + 4 * (r * NL + j)
            if j == NL - 1 and rem < 64: a.e("s_mov_b64 exec, s[30:31]")
            a.e(f"buffer_store_dwordx4 v[{reg}:{reg+3}], v3, s[8:11], s26 offen offset:{1024*j}")
            if j == NL - 1 and rem < 64: a.e("s_mov_b64 exec, -1")
        a.e(f"s_add_u32 s26, s26, {ldd}")
    a.lab(END)
    a.e("s_endpgm")
    return NWG, 0, 40

import os
STAMP = os.environ.get("STAMP", "")
def stamp(a, name, idx):
    if STAMP and STAMP in name and idx < 16:
        a.e(f"s_memtime s[{60+2*idx}:{61+2*idx}]")
def stamp_store(a, name, n):
    if STAMP and STAMP in name:
        L = a.uniq("nost")
        a.e("s_waitcnt lgkmcnt(0) vmcnt(0)")
        a.e(f"s_memtime s[{60+2*n}:{61+2*n}]")
        a.e(f"s_load_dwordx2 s[56:57], s[0:1], 72")
        a.e("s_waitcnt lgkmcnt(0)")
        a.e("s_mov_b32 s58, 256"); a.e("s_mov_b32 s59, 0x00020000")
        a.e("s_cmp_lg_u32 s2, 5"); a.e(f"s_cbranch_scc1 {L}")
        a.e("s_cmp_lg_u32 s28, 0"); a.e(f"s_cbranch_scc1 {L}")
        a.e("v_mov_b32 v1, 0")
        for i in range(n + 1):
            a.e(f"s_sub_u32 s92, s{60+2*i}, s60")
            a.e("v_mov_b32 v2, s92")
            a.e(f"buffer_store_dword v2, v1, s[56:59], 0 offen offset:{4*i}")
        a.lab(L)
def gen_gemm(a, name, M, N, K, MT, NT, NS, NW, act, wt, lda, ldb, epi, amode='plain'):
    MC = M // MT; NC = N // NT; NWG = MC * NC
    WN = NW // 2; NPW = NT // WN
    MTW = MT // 64; NTW = NPW // 32
    ASZ = MT * 128; WROW = NT * 2; WSZ = 64 * WROW; STG = ASZ + WSZ
    lds = NS * STG
    NK = K // 64
    PA = MT // 8 // NW; PB = NT // 8 // NW
    if amode == 'ln': PA = 0
    PPW = PA + PB
    AR = 128
    brows = 1024 // WROW
    END = a.uniq("end")
    a.l.append(f".globl {name}\n.p2align 8\n.type {name},@function")
    a.lab(name)
    a.e(f"s_cmp_ge_u32 s2, {NWG}")
    a.e(f"s_cbranch_scc1 {END}")
    stamp(a, name, 0)
    a.e(f"s_load_dwordx2 s[4:5], s[0:1], {KA[act[0]]}")
    a.e(f"s_load_dwordx2 s[8:9], s[0:1], {KA[wt[0]]}")
    a.e(f"s_load_dwordx2 s[12:13], s[0:1], {KA[epi['out'][0]]}")
    if 'aux' in epi: a.e(f"s_load_dwordx2 s[16:17], s[0:1], {KA[epi['aux'][0]]}")
    if 'aux3' in epi: a.e(f"s_load_dwordx2 s[48:49], s[0:1], {KA[epi['aux3'][0]]}")
    a.e(f"s_and_b32 s24, s2, {MC-1}")
    a.e(f"s_lshr_b32 s25, s2, {MC.bit_length()-1}")
    a.e(f"s_mul_i32 s26, s24, {MT}")
    a.e(f"s_mul_i32 s27, s25, {NT}")
    a.e("v_and_b32 v1, 63, v0")
    a.e("v_lshrrev_b32 v2, 6, v0")
    a.e("s_nop 0")
    a.e("v_readfirstlane_b32 s28, v2")
    a.e("s_waitcnt lgkmcnt(0)")
    srd(a, 4, *act); srd(a, 8, *wt); srd(a, 12, *epi['out'])
    if 'aux' in epi: srd(a, 16, *epi['aux'])
    if 'aux3' in epi: srd(a, 48, *epi['aux3'])
    a.e("s_and_b32 s29, s28, 1")
    a.e("s_lshr_b32 s30, s28, 1")
    a.e("v_lshrrev_b32 v5, 3, v1")
    a.e("v_lshrrev_b32 v6, 4, v1")
    a.e("s_lshl_b32 s31, s29, 2")
    a.e("v_add_u32 v7, s31, v6")
    a.e("v_and_b32 v7, 7, v7")
    a.e("v_and_b32 v8, 7, v1")
    a.e("v_xor_b32 v7, v7, v8")
    a.e(f"v_mul_u32_u24 v3, {lda}, v5")
    a.e("v_lshl_add_u32 v3, v7, 4, v3")
    if NT == 128:
        a.e("v_and_b32 v8, 15, v1")
        a.e("v_lshlrev_b32 v7, 2, v6")
        a.e("v_xor_b32 v7, v7, v8")
        a.e(f"v_mul_u32_u24 v4, {ldb}, v6")
    else:
        a.e("v_bfe_u32 v7, v1, 4, 1")
        a.e("v_lshlrev_b32 v7, 2, v7")
        a.e("v_xor_b32 v7, v7, v8")
        a.e(f"v_mul_u32_u24 v4, {ldb}, v5")
    a.e("v_lshl_add_u32 v4, v7, 4, v4")
    a.e("s_lshl_b32 s31, s28, 3")
    a.e("s_add_u32 s31, s31, s26")
    a.e(f"s_mul_i32 s32, s31, {lda}")
    for i in range(1, PA): a.e(f"s_add_u32 s{32+i}, s32, {8*NW*i*lda}")
    a.e(f"s_mul_i32 s36, s28, {brows*ldb}")
    a.e("s_lshl_b32 s31, s27, 1")
    a.e("s_add_u32 s36, s36, s31")
    for i in range(1, PB): a.e(f"s_add_u32 s{36+i}, s36, {NW*brows*i*ldb}")
    a.e("s_lshl_b32 s45, s28, 10")
    a.e("v_and_b32 v9, 31, v1")
    a.e(f"s_mul_i32 s31, s29, {MT//2}")
    a.e("v_add_u32 v9, s31, v9")
    a.e("v_lshrrev_b32 v14, 5, v1")
    a.e("v_bfe_u32 v15, v1, 1, 3")
    a.e("v_xor_b32 v15, v15, v14")
    a.e("v_lshlrev_b32 v16, 7, v9")
    for ks in range(4):
        a.e(f"v_xor_b32 v17, {2*ks}, v15")
        a.e(f"v_lshl_add_u32 v{10+ks}, v17, 4, v16")
    a.e("v_bfe_u32 v15, v1, 2, 2")
    a.e("v_lshl_add_u32 v16, v14, 3, v15")
    a.e(f"v_mul_u32_u24 v16, {WROW}, v16")
    a.e("v_bfe_u32 v17, v1, 4, 1")
    a.e("v_lshlrev_b32 v17, 1, v17")
    a.e("v_bfe_u32 v18, v1, 1, 1")
    a.e("v_add_u32 v17, v17, v18")
    a.e(f"s_mul_i32 s31, s30, {NPW//8}")
    a.e("v_add_u32 v17, s31, v17")
    if NT == 128: a.e("v_lshlrev_b32 v15, 2, v15")
    else:
        a.e("v_bfe_u32 v15, v1, 3, 1"); a.e("v_lshlrev_b32 v15, 2, v15")
    a.e("v_and_b32 v18, 1, v1")
    a.e("v_lshl_add_u32 v16, v18, 3, v16")
    a.e(f"v_add_u32 v16, {ASZ}, v16")
    for nt in range(NTW):
        a.e(f"v_add_u32 v18, {4*nt}, v17")
        a.e("v_xor_b32 v18, v18, v15")
        a.e(f"v_lshl_add_u32 v{20+nt}, v18, 4, v16")
    ACC = 64
    FA = [32, 48]; FW = [40, 56]
    T0, T1 = 28, 29
    for r in range(ACC, ACC + 16*MTW*NTW): a.e(f"v_mov_b32 v{r}, 0")
    def dma_groups(tile):
        slot = tile % NS
        g = []
        for i in range(PA):
            g.append([f"s_add_u32 m0, s45, {slot*STG + 1024*NW*i}",
                      f"s_add_u32 s46, s{32+i}, {tile*128}",
                      f"buffer_load_dwordx4 v3, s[4:7], s46 offen lds"])
        if amode == 'ln':
            for i in range(2):
                r = AR + 4*(8*i + tile)
                gg = []
                for d in range(4):
                    gg += [f"v_lshlrev_b32 v124, 16, v{r+d}", f"v_and_b32 v125, 0xffff0000, v{r+d}",
                           f"v_sub_f32 v124, v124, v{120+2*i}", f"v_sub_f32 v125, v125, v{120+2*i}",
                           f"v_cvt_pk_bf16_f32 v{r+d}, v124, v125",
                           f"v_lshlrev_b32 v124, 16, v{r+d}", f"v_and_b32 v125, 0xffff0000, v{r+d}",
                           f"v_mul_f32 v124, v124, v{121+2*i}", f"v_mul_f32 v125, v125, v{121+2*i}",
                           f"v_cvt_pk_bf16_f32 v{r+d}, v124, v125"]
                gg += [f"v_add_u32 v31, {slot*STG + 8192*i}, v30", f"ds_write_b128 v31, v[{r}:{r+3}]"]
                g.append(gg)
        for i in range(PB):
            g.append([f"s_add_u32 m0, s45, {slot*STG + ASZ + 1024*NW*i}",
                      f"s_add_u32 s46, s{36+i}, {tile*64*ldb}",
                      f"buffer_load_dwordx4 v4, s[8:11], s46 offen lds"])
        return g
    def dma(tile):
        for g in dma_groups(tile):
            for x in g: a.e(x)
    def frag_reads(ks, st):
        for mt in range(MTW):
            a.e(f"ds_read_b128 v[{FA[st]+4*mt}:{FA[st]+4*mt+3}], v{22+ks} offset:{mt*4096}")
        for nt in range(NTW):
            a.e(f"ds_read_b64_tr_b16 v[{FW[st]+4*nt}:{FW[st]+4*nt+1}], v{26+nt} offset:{ks*16*WROW}")
            a.e(f"ds_read_b64_tr_b16 v[{FW[st]+4*nt+2}:{FW[st]+4*nt+3}], v{26+nt} offset:{ks*16*WROW + 4*WROW}")
    NRD = MTW + 2*NTW
    def compute(tile, swap, extra):
        slot = tile % NS
        for ks in range(4): a.e(f"v_add_u32 v{22+ks}, {slot*STG}, v{10+ks}")
        for nt in range(NTW): a.e(f"v_add_u32 v{26+nt}, {slot*STG}, v{20+nt}")
        frag_reads(0, 0)
        for ks in range(4):
            st = ks & 1
            if ks < 3:
                frag_reads(ks+1, st ^ 1)
                a.e(f"s_waitcnt lgkmcnt({NRD})")
            else:
                a.e("s_waitcnt lgkmcnt(0)")
            for nt in range(NTW):
                for mt in range(MTW):
                    acc = ACC + 16*(nt*MTW + mt)
                    fa = f"v[{FA[st]+4*mt}:{FA[st]+4*mt+3}]"; fw = f"v[{FW[st]+4*nt}:{FW[st]+4*nt+3}]"
                    if swap: a.e(f"v_mfma_f32_32x32x16_bf16 v[{acc}:{acc+15}], {fa}, {fw}, v[{acc}:{acc+15}]")
                    else:    a.e(f"v_mfma_f32_32x32x16_bf16 v[{acc}:{acc+15}], {fw}, {fa}, v[{acc}:{acc+15}]")
                    if extra:
                        for x in extra.pop(0): a.e(x)
        while extra:
            for x in extra.pop(0): a.e(x)
    def mainloop(swap):
        stamp(a, name, 1)
        if amode == 'ln':
            assert NW == 8 and MT == 128 and NK == 8
            for t in range(NS-1):
                for g in dma_groups(t)[2:]:
                    for x in g: a.e(x)
            a.e("v_lshrrev_b32 v30, 3, v0")
            a.e("v_and_b32 v31, 7, v0")
            a.e(f"v_mul_u32_u24 v5, {lda}, v30")
            a.e("v_lshl_add_u32 v5, v31, 4, v5")
            a.e(f"s_mul_i32 s46, s26, {lda}")
            a.e(f"s_add_u32 s47, s46, {64*lda}")
            for i in range(2):
                for kt in range(8):
                    r = AR + 4*(8*i + kt)
                    a.e(f"buffer_load_dwordx4 v[{r}:{r+3}], v5, s[4:7], s{46+i} offen offset:{128*kt}")
            a.e("v_bfe_u32 v5, v0, 4, 3")
            a.e("v_xor_b32 v31, v31, v5")
            a.e("v_lshlrev_b32 v30, 7, v30")
            a.e("v_lshl_add_u32 v30, v31, 4, v30")
            a.e("v_mov_b32 v5, 0x3f803f80")
            for i in range(4): a.e(f"v_mov_b32 v{32+i}, 0")
            for i in range(2):
                for kt in range(8):
                    a.e(f"s_waitcnt vmcnt({15 - 8*i - kt})")
                    for d in range(4):
                        r = AR + 4*(8*i + kt) + d
                        a.e(f"v_dot2_f32_bf16 v{32+2*i}, v{r}, v5, v{32+2*i}")
                        a.e(f"v_dot2_f32_bf16 v{33+2*i}, v{r}, v{r}, v{33+2*i}")
            a.e("s_nop 3")
            for qp in ("quad_perm:[1,0,3,2]", "quad_perm:[2,3,0,1]", "row_half_mirror"):
                for i in range(4):
                    a.e(f"v_add_f32_dpp v{32+i}, v{32+i}, v{32+i} {qp} row_mask:0xf bank_mask:0xf")
                a.e("s_nop 1")
            for i in range(2):
                stats_finish(a, 32+2*i, 33+2*i, 512, 36)
                a.e(f"v_mov_b32 v{120+2*i}, v{32+2*i}")
                a.e(f"v_mov_b32 v{121+2*i}, v{33+2*i}")
            for t in range(NS-1):
                for g in dma_groups(t)[:2]:
                    for x in g: a.e(x)
        else:
            for t in range(min(NS-1, NK)): dma(t)
        stamp(a, name, 2)
        for t in range(NK):
            ahead = min(NK - 1, t + NS - 2) - t
            a.e(f"s_waitcnt vmcnt({ahead*PPW}) lgkmcnt(0)")
            a.e("s_barrier")
            if t < 9: stamp(a, name, 3 + t)
            if t == NK - 1 and early_aux: early_aux()
            compute(t, swap, dma_groups(t + NS - 1) if t + NS - 1 < NK else [])
        stamp(a, name, 12)
        a.e("s_nop 15")
    kind = epi['kind']
    SA = 96
    early_aux = None
    if kind in ('res', 'gate'):
        def early_aux():
            lda2 = epi['ldaux']
            a.e(f"v_mul_u32_u24 v18, {lda2}, v9")
            a.e("v_lshl_add_u32 v18, v14, 3, v18")
            a.e(f"s_mul_i32 s31, s30, {NPW*2}")
            a.e("v_add_u32 v18, s31, v18")
            a.e(f"s_mul_i32 s43, s26, {lda2}")
            a.e("s_lshl_b32 s42, s27, 1")
            a.e("s_add_u32 s43, s43, s42")
            if kind == 'gate':
                a.e("v_add_u32 v19, s26, v9")
                a.e("v_lshlrev_b32 v19, 1, v19")
                for mt in range(MTW):
                    a.e(f"buffer_load_ushort v{116+mt}, v19, s[48:51], 0 offen offset:{mt*64}")
            for mt in range(MTW):
                a.e(f"s_add_u32 s44, s43, {mt*32*lda2}")
                for nt in range(NTW):
                    for rq in range(4):
                        r = SA + 8*(mt*NTW + nt) + 2*rq
                        a.e(f"buffer_load_dwordx2 v[{r}:{r+1}], v18, s[16:19], s44 offen offset:{nt*64+rq*16}")
    if kind == 'qkv':
        LV = a.uniq("vpath")
        a.e("s_cmp_ge_u32 s25, 8")
        a.e(f"s_cbranch_scc1 {LV}")
        mainloop(False)
        a.e("v_lshlrev_b32 v17, 5, v9")
        a.e("v_lshl_add_u32 v17, v14, 3, v17")
        a.e(f"s_mul_i32 s31, s30, {NPW//16*65536}")
        a.e("v_add_u32 v17, s31, v17")
        a.e("s_lshr_b32 s41, s25, 2")
        a.e("s_lshl_b32 s41, s41, 21")
        a.e("s_and_b32 s42, s25, 3")
        a.e("s_lshl_b32 s42, s42, 19")
        a.e("s_add_u32 s41, s41, s42")
        a.e("s_lshl_b32 s42, s26, 5")
        a.e("s_add_u32 s41, s41, s42")
        for nt in range(NTW):
            for mt in range(MTW):
                acc = ACC + 16*(nt*MTW + mt)
                for rq in range(4):
                    r = acc + 4*rq
                    a.e(f"v_cvt_pk_bf16_f32 v{T0}, v{r}, v{r+1}")
                    a.e(f"v_cvt_pk_bf16_f32 v{T1}, v{r+2}, v{r+3}")
                    a.e(f"s_add_u32 s42, s41, {mt*1024 + (2*nt + (rq>>1))*65536}")
                    a.e(f"buffer_store_dwordx2 v[{T0}:{T1}], v17, s[12:15], s42 offen offset:{(rq&1)*16}")
                    a.e("s_nop 1")
        a.e(f"s_branch {END}")
        a.lab(LV)
        mainloop(True)
        a.e("v_and_b32 v17, 31, v1")
        a.e(f"s_mul_i32 s31, s30, {NPW}")
        a.e("v_add_u32 v17, s31, v17")
        a.e("v_lshlrev_b32 v17, 12, v17")
        a.e("v_lshl_add_u32 v17, v14, 3, v17")
        a.e("s_lshl_b32 s31, s29, 7")
        a.e("v_add_u32 v17, s31, v17")
        a.e("s_sub_u32 s41, s27, 1024")
        a.e("s_lshl_b32 s41, s41, 12")
        a.e(f"s_add_u32 s41, s41, {WS_VT}")
        a.e("s_lshl_b32 s42, s26, 1")
        a.e("s_add_u32 s41, s41, s42")
        for nt in range(NTW):
            for mt in range(MTW):
                acc = ACC + 16*(nt*MTW + mt)
                for rq in range(4):
                    r = acc + 4*rq
                    a.e(f"v_cvt_pk_bf16_f32 v{T0}, v{r}, v{r+1}")
                    a.e(f"v_cvt_pk_bf16_f32 v{T1}, v{r+2}, v{r+3}")
                    a.e(f"s_add_u32 s42, s41, {nt*32*4096 + mt*64}")
                    a.e(f"buffer_store_dwordx2 v[{T0}:{T1}], v17, s[12:15], s42 offen offset:{rq*16}")
                    a.e("s_nop 1")
    else:
        mainloop(False)
        ldo = epi['ldo']
        a.e(f"v_mul_u32_u24 v17, {ldo}, v9")
        a.e("v_lshl_add_u32 v17, v14, 3, v17")
        a.e(f"s_mul_i32 s31, s30, {NPW*2}")
        a.e("v_add_u32 v17, s31, v17")
        a.e(f"s_mul_i32 s41, s26, {ldo}")
        a.e("s_lshl_b32 s42, s27, 1")
        a.e("s_add_u32 s41, s41, s42")
        E = 48
        if kind in ('res', 'gate'):
            a.e("s_waitcnt vmcnt(0)")
        for mt in range(MTW):
            a.e(f"s_add_u32 s42, s41, {mt*32*ldo}")
            if kind == 'gate':
                a.e(f"v_lshlrev_b32 v{116+mt}, 16, v{116+mt}")
            for nt in range(NTW):
                acc = ACC + 16*(nt*MTW + mt)
                for rq in range(4):
                    r = acc + 4*rq
                    a.e(f"v_cvt_pk_bf16_f32 v{T0}, v{r}, v{r+1}")
                    a.e(f"v_cvt_pk_bf16_f32 v{T1}, v{r+2}, v{r+3}")
                    unpack2(a, E, E+1, T0); unpack2(a, E+2, E+3, T1)
                    if kind == 'res':
                        x0 = SA + 8*(mt*NTW + nt) + 2*rq
                        unpack2(a, E+4, E+5, x0); unpack2(a, E+6, E+7, x0+1)
                        for j in range(4): a.e(f"v_add_f32 v{E+j}, v{E+j}, v{E+4+j}")
                    elif kind == 'gate':
                        x0 = SA + 8*(mt*NTW + nt) + 2*rq
                        for j in range(4): a.e(f"v_add_f32 v{E+j}, v{E+j}, v{116+mt}")
                        a.e(f"v_cvt_pk_bf16_f32 v{T0}, v{E}, v{E+1}")
                        a.e(f"v_cvt_pk_bf16_f32 v{T1}, v{E+2}, v{E+3}")
                        unpack2(a, E, E+1, T0); unpack2(a, E+2, E+3, T1)
                        unpack2(a, E+4, E+5, x0); unpack2(a, E+6, E+7, x0+1)
                        for j in range(4): a.e(f"v_mul_f32 v{E+j}, v{E+j}, v{E+4+j}")
                    elif kind == 'gelu':
                        c1 = -2.0 * 1.4426950408889634 * 0.7978845608028654
                        for j in range(4):
                            a.e(f"v_mul_f32 v{E+4+j}, v{E+j}, v{E+j}")
                            a.e(f"v_mul_f32 v{E+4+j}, 0x{f32hex(0.044715*c1)}, v{E+4+j}")
                            a.e(f"v_add_f32 v{E+4+j}, 0x{f32hex(c1)}, v{E+4+j}")
                            a.e(f"v_mul_f32 v{E+4+j}, v{E+4+j}, v{E+j}")
                            a.e(f"v_exp_f32 v{E+4+j}, v{E+4+j}")
                        a.e("s_nop 0")
                        for j in range(4): a.e(f"v_add_f32 v{E+4+j}, 1.0, v{E+4+j}")
                        for j in range(4): a.e(f"v_rcp_f32 v{E+4+j}, v{E+4+j}")
                        a.e("s_nop 0")
                        for j in range(4): a.e(f"v_mul_f32 v{E+j}, v{E+j}, v{E+4+j}")
                    a.e(f"v_cvt_pk_bf16_f32 v{T0}, v{E}, v{E+1}")
                    a.e(f"v_cvt_pk_bf16_f32 v{T1}, v{E+2}, v{E+3}")
                    a.e(f"buffer_store_dwordx2 v[{T0}:{T1}], v17, s[12:15], s42 offen offset:{nt*64+rq*16}")
                    a.e("s_nop 1")
    stamp_store(a, name, 13)
    a.lab(END)
    a.e("s_endpgm")
    return NWG, lds, (192 if amode == 'ln' else 128), NW*64

NSQ = int(os.environ.get("NSQ", "4"))
def main():
    a = Asm()
    launches = []; kds = []
    def add(name, nwg, lds, nv, blk=256):
        launches.append(f"; @launch kernel={name} grid=({nwg},1,1) block=({blk},1,1) lds={lds}")
        kds.append(kd(name, nv))
    FUSE = os.environ.get("FUSE", "1") == "1"
    if not FUSE:
        add("k0_ln1_kernel", *gen_ln(a, "k0_ln1_kernel", ('x', 0, 2*MB), ('ws', WS_L1, 2*MB), 512, 1024, 1024))
    add("k1_qkv_kernel", *gen_gemm(a, "k1_qkv_kernel", S, 1536, 512, 128, 128, NSQ, 8, ('x', 0, 2*MB) if FUSE else ('ws', WS_L1, 2*MB), ('wqkv', 0, 512*1536*2), 1024, 3072,
                 dict(kind='qkv', out=('ws', WS_Q, 6*MB)), amode='ln' if FUSE else 'plain'))
    import attn2 as attn
    add("k2_attn_kernel", *attn.gen_attn(a, "k2_attn_kernel"))
    add("k3_wo_kernel", *gen_gemm(a, "k3_wo_kernel", S, 512, 512, 64, 64, 8, 4, ('ws', WS_O, 2*MB), ('wo', 0, 512*512*2), 1024, 1024,
                 dict(kind='res', out=('ws', WS_H, 2*MB), ldo=1024, aux=('x', 0, 2*MB), ldaux=1024)))
    if not FUSE:
        add("k3b_ln2_kernel", *gen_ln(a, "k3b_ln2_kernel", ('ws', WS_H, 2*MB), ('ws', WS_L2, 2*MB), 512, 1024, 1024))
    add("k4_win_kernel", *gen_gemm(a, "k4_win_kernel", S, 1792, 512, 128, 128, NSQ, 8, ('ws', WS_H, 2*MB) if FUSE else ('ws', WS_L2, 2*MB), ('w_in', 0, 512*1792*2), 1024, 3584,
                 dict(kind='gelu', out=('ws', WS_Z, S*1792*2), ldo=3584), amode='ln' if FUSE else 'plain'))
    add("k4b_lnz_kernel", *gen_ln(a, "k4b_lnz_kernel", ('ws', WS_Z + 896*2, S*1792*2 - 896*2), ('ws', WS_ZN, S*896*2), 896, 3584, 1792))
    add("k5_sp_kernel", *gen_gemm(a, "k5_sp_kernel", S, 896, 2048, 64, 128, 6, 8, ('w_sp', 0, S*S*2), ('ws', WS_ZN, S*896*2), 4096, 1792,
                 dict(kind='gate', out=('ws', WS_Y, S*896*2), ldo=1792, aux=('ws', WS_Z, S*1792*2), ldaux=3584, aux3=('b_sp', 0, S*2))))
    add("k6_out_kernel", *gen_gemm(a, "k6_out_kernel", S, 512, 896, 64, 64, 8, 4, ('ws', WS_Y, S*896*2), ('w_out', 0, 896*512*2), 1792, 1024,
                 dict(kind='res', out=('out', 0, 2*MB), ldo=1024, aux=('ws', WS_H, 2*MB), ldaux=1024)))
    hdr = open(f"cdna_kernels/{NAME}.s.ref").read().split("; @launch")[0]
    out = hdr + "\n".join(launches) + "\n" + '.amdgcn_target "amdgcn-amd-amdhsa--gfx950"\n.text\n' + a.text() + "".join(kds)
    open(sys.argv[1] if len(sys.argv) > 1 else f"cdna_kernels/{NAME}.s", "w").write(out)

if __name__ == "__main__":
    sys.path.insert(0, "dev")
    main()
```
